```python
import torch

def _softmax(x, axis=-1):
    return torch.softmax(x, dim=axis)
def _gelu(x):
    return torch.nn.functional.gelu(x, approximate="tanh")
def _silu(x):
    return torch.nn.functional.silu(x)
def _sigmoid(x):
    return torch.sigmoid(x)
def _layernorm(x, axis=-1, eps=1e-5):
    m = x.mean(dim=axis, keepdim=True)
    v = x.var(dim=axis, keepdim=True, unbiased=False)
    return (x - m) / torch.sqrt(v + eps)
def _scatter_add(tgt, idx, src, axis=0):
    return tgt.clone().index_add_(axis, idx, src)
def _segment_sum(src, seg, n):
    out = torch.zeros((n,) + src.shape[1:], dtype=src.dtype)
    return out.index_add_(0, seg, src)
def _pad(x, pw):
    flat = tuple(v for pair in reversed(pw) for v in pair)
    return torch.nn.functional.pad(x, flat)

kernel_name = 'recurrent_scan__sliding_block__glu_gated_bilinear__prompt'

def setup_inputs():

    _w = (lambda a: (lambda t: t.to(torch.bfloat16) if t.is_floating_point() else t)(torch.as_tensor(a)))
    def _A_setup():
        B, S, D = 1, 2048, 448
        return {
            "x": _w((lambda *s: torch.randn(*s, dtype=torch.bfloat16) * 0.05)(B, S, D)),
            "wqkv": _w((lambda *s: torch.randn(*s, dtype=torch.bfloat16) * 0.2)(D, 3 * D)),
            "wo": _w((lambda *s: torch.randn(*s, dtype=torch.bfloat16) * 0.2)(D, D)),
        }
    _A_in = _A_setup()

    def _B_setup():
        B, S, D, F = 1, 2048, 448, 1792
        return {
            "x": _w((lambda *s: torch.randn(*s, dtype=torch.bfloat16) * 0.05)(B, S, D)),
            "w_gate": _w((lambda *s: torch.randn(*s, dtype=torch.bfloat16) * 0.1)(D, F) * (D ** -0.5)),
            "w_up": _w((lambda *s: torch.randn(*s, dtype=torch.bfloat16) * 0.1)(D, F) * (D ** -0.5)),
            "w_down": _w((lambda *s: torch.randn(*s, dtype=torch.bfloat16) * 0.1)(F, D) * (F ** -0.5)),
        }
    _B_in = _B_setup()

    return {
        "A_x": _A_in["x"],
        "A_wqkv": _A_in["wqkv"],
        "A_wo": _A_in["wo"],
        "B_x": _B_in["x"],
        "B_w_gate": _B_in["w_gate"],
        "B_w_up": _B_in["w_up"],
        "B_w_down": _B_in["w_down"],
    }

def reference(A_x, A_wqkv, A_wo, B_x, B_w_gate, B_w_up, B_w_down):
    def _A_ref(x, wqkv, wo):
        B, S, D = x.shape
        H = 16; Dh = D // H; W = 256
        qkv = (lambda x, *d: x.permute(*d))((x @ wqkv).reshape(B, S, 3, H, Dh), 2, 0, 3, 1, 4)
        q, k, v = qkv[0], qkv[1], qkv[2]
        scores = torch.einsum("bhqd,bhkd->bhqk", q, k) * (Dh ** -0.5)
        idx = torch.arange(S)
        mask = (idx[:, None] - idx[None, :] >= 0) & (idx[:, None] - idx[None, :] < W)
        scores = torch.where(mask[None, None], scores, -1e9)
        p = _softmax(scores, axis=-1)
        o = torch.einsum("bhqk,bhkd->bhqd", p, v)
        return (lambda x, *d: x.permute(*d))(o, 0, 2, 1, 3).reshape(B, S, D) @ wo

    def _B_ref(x, w_gate, w_up, w_down):
        g = torch.einsum("bsd,df->bsf", x, w_gate)
        u = torch.einsum("bsd,df->bsf", x, w_up)
        h = g * u
        return torch.einsum("bsf,fd->bsd", h, w_down)

    x = A_x
    xn = _layernorm(x, axis=-1)
    s = _A_ref(xn, A_wqkv, A_wo)
    g = _silu(_B_ref(xn, B_w_gate, B_w_up, B_w_down))
    return x + s * g
```

```python
import re

REG_RE = re.compile(r'\b([vsa])\[(\d+):(\d+)\]|\b([vsa])(\d+)\b')

def regs_of(tok):
    out = []
    for m in REG_RE.finditer(tok):
        if m.group(1):
            out += [(m.group(1), i) for i in range(int(m.group(2)), int(m.group(3)) + 1)]
        else:
            out.append((m.group(4), int(m.group(5))))
    if re.search(r'\bvcc\b', tok): out += [('s', 106), ('s', 107)]
    if re.search(r'\bvcc_lo\b', tok): out += [('s', 106)]
    if re.search(r'\bvcc_hi\b', tok): out += [('s', 107)]
    if re.search(r'\bm0\b', tok): out += [('m', 0)]
    if re.search(r'\bexec(_lo|_hi)?\b', tok): out += [('e', 0)]
    return out

TRANS = ('v_exp_f32', 'v_log_f32', 'v_rcp_f32', 'v_rsq_f32', 'v_sqrt_f32', 'v_sin_f32', 'v_cos_f32')

class Ins:
    __slots__ = ('op', 'text', 'w', 'r', 'cls', 'passes', 'srcc', 'nstates', 'lds_dma', 'widestore', 'data')

def classify(text):
    t = text.split(';')[0].strip()
    parts = t.split(None, 1)
    op = parts[0]
    ops = [x.strip() for x in (parts[1].split(',') if len(parts) > 1 else [])]
    I = Ins(); I.op = op; I.text = text; I.w = []; I.r = []; I.passes = 0; I.srcc = []; I.nstates = 1
    I.lds_dma = False; I.widestore = False; I.data = []
    if op == 's_nop':
        I.cls = 'nop'; I.nstates = int(ops[0], 0) + 1; return I
    if op.startswith('v_mfma'):
        I.cls = 'mfma'; I.passes = 8 if '32x32' in op else 4
        I.w = regs_of(ops[0]); I.r = regs_of(ops[1]) + regs_of(ops[2]); I.srcc = regs_of(ops[3]); return I
    if op.startswith('buffer_') or op.startswith('global_'):
        I.cls = 'vmem'
        allr = []
        if 'store' in op:
            if op.startswith('buffer_'):
                I.data = regs_of(ops[0]); I.r = I.data + sum([regs_of(x) for x in ops[1:]], [])
            else:
                I.data = regs_of(ops[1]); I.r = regs_of(ops[0]) + I.data + sum([regs_of(x) for x in ops[2:]], [])
            I.widestore = ('x4' in op or 'x3' in op)
        elif 'atomic' in op:
            I.r = sum([regs_of(x) for x in ops], [])
            if 'sc0' in t: I.w = regs_of(ops[0]) if op.startswith('buffer_') else regs_of(ops[0])
        elif re.search(r'\blds\b', t) or '_lds_' in op:
            I.lds_dma = True; I.r = sum([regs_of(x) for x in ops], []) + [('m', 0)]
        elif op.startswith('buffer_wbl2') or op.startswith('buffer_inv'):
            pass
        else:
            I.w = regs_of(ops[0]); I.r = sum([regs_of(x) for x in ops[1:]], [])
        return I
    if op.startswith('ds_'):
        I.cls = 'ds'
        if 'write' in op:
            I.r = sum([regs_of(x) for x in ops], [])
        else:
            I.w = regs_of(ops[0]); I.r = sum([regs_of(x) for x in ops[1:]], [])
        return I
    if op.startswith('v_'):
        I.cls = 'valu'
        if op.startswith('v_dot2'): I.cls = 'dot'
        elif op in TRANS: I.cls = 'trans'
        elif op.startswith('v_permlane'): I.cls = 'perm'
        elif op.startswith('v_readfirstlane') or op.startswith('v_readlane'): I.cls = 'rdlane'
        if op.startswith('v_cmp'):
            I.w = regs_of(ops[0]); I.r = sum([regs_of(x) for x in ops[1:]], [])
        elif op.startswith('v_permlane') and 'swap' in op:
            I.w = regs_of(ops[0]) + regs_of(ops[1]); I.r = I.w[:]
        elif op in ('v_add_co_u32', 'v_sub_co_u32', 'v_addc_co_u32', 'v_subrev_co_u32'):
            I.w = regs_of(ops[0]) + regs_of(ops[1]); I.r = sum([regs_of(x) for x in ops[2:]], [])
        else:
            I.w = regs_of(ops[0]); I.r = sum([regs_of(x) for x in ops[1:]], [])
            if op.startswith('v_fmac') or op.startswith('v_dot2c'): I.r += I.w
        if op.startswith('v_cndmask') and len(ops) == 3: I.r += [('s', 106), ('s', 107)]
        return I
    if op.startswith('s_'):
        I.cls = 'salu'
        if op.startswith('s_cmp') or op.startswith('s_cbranch') or op in ('s_branch', 's_barrier', 's_waitcnt', 's_endpgm', 's_setprio', 's_sleep'):
            I.r = sum([regs_of(x) for x in ops], [])
        else:
            I.w = regs_of(ops[0]); I.r = sum([regs_of(x) for x in ops[1:]], [])
            if 'saveexec' in op: I.w += [('e', 0)]
        return I
    raise ValueError("unknown op " + text)

class Emit:
    def __init__(self):
        self.lines = []
        self.hist = []
        self.vm = []
        self.lg = []
        self.auto = True
        self.uid = 0
        self.nops_inserted = 0
    def raw(self, s): self.lines.append(s)
    def comment(self, s): self.lines.append('    ; ' + s)
    def label(self, name):
        self.lines.append(name + ':')
        self.flush()
    def flush(self, n=0):
        if n: self._push(classify('s_nop %d' % (n - 1)))
        self.hist = []
    def newlabel(self, base):
        self.uid += 1
        return 'L_%s_%d' % (base, self.uid)
    def _push(self, I):
        self.lines.append('    ' + I.text)
        self.hist.append(I)
        if len(self.hist) > 40: self.hist.pop(0)
    def need(self, I):
        need = 0
        dist = 0
        R = set(I.r); W = set(I.w); C = set(I.srcc)
        isvalu = I.cls in ('valu', 'dot', 'trans', 'perm', 'rdlane')
        for P in reversed(self.hist):
            PW = set(P.w)
            req = 0
            pvalu = P.cls in ('valu', 'dot', 'trans', 'perm', 'rdlane')
            if P.cls == 'mfma':
                if I.cls == 'mfma':
                    if PW & R: req = max(req, 8 if P.passes == 4 else 12)
                    if PW & C:
                        if not (PW == C and P.passes == I.passes): req = max(req, 6 if P.passes == 4 else 10)
                    if (PW & W) and not (PW == set(I.w) and (PW & C)):
                        req = max(req, 6 if P.passes == 4 else 10)
                else:
                    if PW & (R | W): req = max(req, 8 if P.passes == 4 else 12)
                    if isvalu and (set(P.srcc) & W): req = max(req, 3 if P.passes == 4 else 7)
            if pvalu:
                vw = {x for x in PW if x[0] in 'va'}
                sw = {x for x in PW if x[0] == 's'}
                if I.cls == 'mfma' and (vw & (R | C)): req = max(req, 2)
                if P.cls == 'dot' and (vw & (R | W)):
                    if not (I.cls == 'dot' and I.op == P.op and not (vw & set(regs_ab(I)))): req = max(req, 3)
                if P.cls == 'trans' and isvalu and I.cls != 'trans' and (vw & R): req = max(req, 1)
                if I.cls == 'rdlane' and (vw & R): req = max(req, 1)
                if I.cls == 'perm' and (vw & R): req = max(req, 2)
                if isvalu and (sw & R): req = max(req, 2)
                if I.cls == 'rdlane' and (sw & R): req = max(req, 4)
                if I.cls == 'vmem' and (sw & R): req = max(req, 5)
                if I.cls == 'salu' and (sw & R): req = max(req, 1)
                if 'dpp' in I.text and (vw & R): req = max(req, 2)
            if P.cls == 'vmem' and P.widestore and (set(P.data) & W):
                req = max(req, 2)
            if P.cls == 'salu' and ('m', 0) in PW and I.lds_dma: req = max(req, 1)
            if req > dist: need = max(need, req - dist)
            dist += P.nstates
            if dist >= 20: break
        return need
    def __call__(self, text):
        for t in text.strip().split('\n'):
            t = t.strip()
            if not t or t.startswith(';'): continue
            I = classify(t)
            if self.auto:
                n = self.need(I)
                while n > 0:
                    k = min(n, 16)
                    self._push(classify('s_nop %d' % (k - 1))); self.nops_inserted += k
                    n -= k
            self._push(I)
    def vmem(self, text, tag=None):
        self(text); self.vm.append(tag)
    def vwait(self, tag, extra=''):
        idx = max(i for i, t in enumerate(self.vm) if t == tag)
        n = len(self.vm) - 1 - idx
        self('s_waitcnt vmcnt(%d)%s' % (min(n, 63), extra))
    def lds(self, text, tag=None):
        self(text); self.lg.append(tag)
    def lwait(self, tag):
        idx = max(i for i, t in enumerate(self.lg) if t == tag)
        n = len(self.lg) - 1 - idx
        self('s_waitcnt lgkmcnt(%d)' % min(n, 15))
    def text(self): return '\n'.join(self.lines) + '\n'

def regs_ab(I):
    t = I.text.split(';')[0].strip().split(None, 1)[1].split(',')
    return regs_of(t[1]) + regs_of(t[2])

def vr(b, n=1):
    return 'v%d' % b if n == 1 else 'v[%d:%d]' % (b, b + n - 1)
def sr(b, n=1):
    return 's%d' % b if n == 1 else 's[%d:%d]' % (b, b + n - 1)
```

```python
from asmlib import *

Q_OFF = 0
K_OFF = 2 << 20
V_OFF = 4 << 20
H_OFF = 6 << 20
O_OFF = 14 << 20
WS_USED = 16 << 20

SLOT = 14848
NSLOT = 10
UPOFF = 7168 + 128

def common_prologue(E, nwg=256):
    E('s_cmp_ge_u32 s2, %d' % nwg)
    E('s_cbranch_scc1 L_exit_%s' % E.kname)
    E('s_load_dwordx16 s[4:19], s[0:1], 0')
    E('s_load_dwordx4 s[20:23], s[0:1], 64')

def srd(E, d, p, nbytes):
    E('s_mov_b32 s%d, s%d' % (d, p))
    E('s_and_b32 s%d, s%d, 0xffff' % (d + 1, p + 1))
    E('s_mov_b32 s%d, 0x%x' % (d + 2, nbytes))
    E('s_mov_b32 s%d, 0x00020000' % (d + 3))

def decode_rb_j(E):
    E('s_and_b32 s49, s2, 7')
    E('s_lshr_b32 s50, s2, 3')
    E('s_and_b32 s44, s49, 3')
    E('s_lshl_b32 s44, s44, 2')
    E('s_and_b32 s51, s50, 3')
    E('s_add_u32 s44, s44, s51')
    E('s_lshr_b32 s45, s49, 2')
    E('s_lshl_b32 s45, s45, 3')
    E('s_lshr_b32 s51, s50, 2')
    E('s_add_u32 s45, s45, s51')

XB = 16
ACC = 128
WF = 192
T = 224
SX, SWQ, SWG, SWU, SWS = 24, 28, 32, 36, 40

def X(s): return XB + 4 * s

def norm_ops(s):
    ops = []
    x = X(s)
    for i in range(4):
        ops.append('v_dot2_f32_bf16 v%d, v%d, s56, v10' % (T + 2 * i, x + i))
        ops.append('v_dot2_f32_bf16 v%d, v%d, s57, v10' % (T + 2 * i + 1, x + i))
    for i in range(4):
        ops.append('v_cvt_pk_bf16_f32 v%d, v%d, v%d' % (T + 8 + i, T + 2 * i, T + 2 * i + 1))
    for i in range(4):
        ops.append('v_lshlrev_b32 v%d, 16, v%d' % (T + 2 * i, T + 8 + i))
        ops.append('v_and_b32 v%d, s58, v%d' % (T + 2 * i + 1, T + 8 + i))
    for i in range(8):
        ops.append('v_mul_f32 v%d, v%d, v11' % (T + i, T + i))
    for i in range(4):
        ops.append('v_cvt_pk_bf16_f32 v%d, v%d, v%d' % (x + i, T + 2 * i, T + 2 * i + 1))
    return ops

def dma_stage(E, g):
    sb = (g % NSLOT) * SLOT
    if g < 7:
        E('s_mov_b64 exec, s[52:53]')
        for n in range(2):
            E('s_add_u32 m0, s59, %d' % (sb + n * 768))
            E('s_mov_b32 s50, %d' % (g * 64 * 2688 + n * 4 * 2688))
            E.vmem('buffer_load_dwordx4 v5, s[%d:%d], s50 offen lds' % (SWQ, SWQ + 3), ('st', g))
        E('s_mov_b64 exec, -1')
    else:
        tau = g - 7
        E('s_mov_b64 exec, s[54:55]')
        E('s_mov_b32 s50, %d' % (tau * 32 * 3584))
        E('s_add_u32 m0, s60, %d' % sb)
        E.vmem('buffer_load_dwordx4 v6, s[%d:%d], s50 offen lds' % (SWG, SWG + 3), ('st', g))
        E('s_add_u32 m0, s60, %d' % (sb + UPOFF))
        E.vmem('buffer_load_dwordx4 v6, s[%d:%d], s50 offen lds' % (SWU, SWU + 3), ('st', g))
        E('s_mov_b64 exec, -1')

def gen_k1_body(E, st_flags='', after_qkv=None, after_h=None):
    E('v_and_b32 v1, 63, v0')
    E('v_lshrrev_b32 v12, 6, v0')
    E('v_lshrrev_b32 v2, 5, v1')
    E('v_and_b32 v3, 31, v1')
    E('v_readfirstlane_b32 s46, v12')
    decode_rb_j(E)
    E('s_and_b32 s47, s46, 3')
    E('s_lshr_b32 s48, s46, 2')
    E('s_mov_b32 s52, -1'); E('s_mov_b32 s53, 0xffff')
    E('s_mov_b32 s54, -1'); E('s_mov_b32 s55, 0xffffff')
    E('s_mov_b32 s56, 0x00003f80'); E('s_mov_b32 s57, 0x3f800000'); E('s_mov_b32 s58, 0xffff0000')
    E('s_mul_i32 s59, s46, 1536'); E('s_mul_i32 s60, s46, 896')
    E('s_lshl_b32 s49, s45, 7'); E('s_lshl_b32 s50, s47, 5'); E('s_add_u32 s49, s49, s50')
    E('v_add_u32 v4, s49, v3')
    E('v_mul_u32_u24 v4, 896, v4')
    E('v_lshl_add_u32 v4, v2, 4, v4')
    E('s_waitcnt lgkmcnt(0)')
    srd(E, SX, 4, 2048 * 896); srd(E, SWQ, 6, 448 * 2688); srd(E, SWG, 12, 448 * 3584); srd(E, SWU, 14, 448 * 3584)
    srd(E, SWS, 22, WS_USED)
    for s in range(28):
        E.vmem('buffer_load_dwordx4 v[%d:%d], v4, s[%d:%d], 0 offen offset:%d' % (X(s), X(s) + 3, SX, SX + 3, s * 32), 'x')
    E('v_mul_u32_u24 v12, 43, v1'); E('v_lshrrev_b32 v12, 9, v12')
    E('v_mul_u32_u24 v13, 12, v12'); E('v_sub_u32 v13, v1, v13')
    E('s_lshl_b32 s49, s46, 3'); E('v_add_u32 v12, s49, v12')
    E('v_mul_u32_u24 v5, 2688, v12')
    E('v_lshrrev_b32 v14, 2, v13'); E('v_mul_u32_u24 v14, 896, v14'); E('v_add_u32 v5, v5, v14')
    E('v_and_b32 v14, 3, v13'); E('v_lshl_add_u32 v5, v14, 4, v5')
    E('s_mul_i32 s49, s44, 56'); E('v_add_u32 v5, s49, v5')
    E('v_mul_u32_u24 v12, 37, v1'); E('v_lshrrev_b32 v12, 9, v12')
    E('v_mul_u32_u24 v13, 14, v12'); E('v_sub_u32 v13, v1, v13')
    E('s_lshl_b32 s49, s46, 2'); E('v_add_u32 v12, s49, v12')
    E('v_mul_u32_u24 v6, 3584, v12'); E('v_lshl_add_u32 v6, v13, 4, v6')
    E('s_mul_i32 s49, s44, 224'); E('v_add_u32 v6, s49, v6')
    for g in range(NSLOT):
        dma_stage(E, g)
    E('v_and_b32 v12, 15, v1'); E('v_lshrrev_b32 v13, 2, v12'); E('v_lshl_add_u32 v13, v2, 3, v13')
    E('v_and_b32 v12, 3, v12'); E('v_lshlrev_b32 v12, 3, v12')
    E('v_bfe_u32 v14, v1, 4, 1')
    E('v_mul_u32_u24 v7, 192, v13'); E('v_add_u32 v7, v7, v12'); E('v_lshl_add_u32 v7, v14, 5, v7')
    E('v_mul_u32_u24 v8, 224, v13'); E('v_add_u32 v8, v8, v12'); E('v_mul_u32_u24 v14, %d, v14' % UPOFF); E('v_add_u32 v8, v8, v14')
    E('s_lshl_b32 s49, s45, 7'); E('s_lshl_b32 s50, s47, 5'); E('s_add_u32 s49, s49, s50')
    E('v_add_u32 v12, s49, v3')
    E('v_lshrrev_b32 v13, 4, v12'); E('v_lshlrev_b32 v240, 10, v13')
    E('v_and_b32 v13, 15, v12'); E('v_lshl_add_u32 v240, v13, 4, v240')
    E('v_lshl_add_u32 v240, v2, 9, v240')
    E('s_lshl_b32 s50, s44, 17'); E('v_add_u32 v240, s50, v240')
    E('s_lshl_b32 s49, s45, 2'); E('s_add_u32 s49, s49, s47'); E('s_lshl_b32 s51, s49, 11'); E('s_add_u32 s51, s51, s50')
    E('s_add_u32 s51, s51, %d' % V_OFF)
    E('v_lshrrev_b32 v13, 4, v3'); E('v_lshlrev_b32 v241, 10, v13'); E('v_and_b32 v13, 15, v3'); E('v_lshl_add_u32 v241, v13, 4, v241')
    E('v_lshl_add_u32 v241, v2, 8, v241'); E('v_add_u32 v241, s51, v241')
    E('s_mul_i32 s51, s49, 112'); E('s_mul_i32 s50, s44, 7'); E('s_add_u32 s51, s51, s50'); E('s_lshl_b32 s51, s51, 10')
    E('s_add_u32 s51, s51, %d' % H_OFF)
    E('v_lshlrev_b32 v242, 4, v1'); E('v_add_u32 v242, s51, v242')
    E('v_cmp_le_u32 s[62:63], 32, v1')
    E('v_cmp_le_u32 s[64:65], 28, v3')
    E('s_mov_b32 s61, %d' % K_OFF)
    E.vwait('x')
    E('s_mov_b32 s49, 0x3f803f80')
    for s in range(28):
        for i in range(4):
            d = X(s) + i
            if s == 0:
                E('v_dot2_f32_bf16 v%d, v%d, s49, 0' % (T + i, d))
                E('v_dot2_f32_bf16 v%d, v%d, v%d, 0' % (T + 4 + i, d, d))
            else:
                E('v_dot2_f32_bf16 v%d, v%d, s49, v%d' % (T + i, d, T + i))
                E('v_dot2_f32_bf16 v%d, v%d, v%d, v%d' % (T + 4 + i, d, d, T + 4 + i))
    E('v_add_f32 v12, v%d, v%d' % (T, T + 1)); E('v_add_f32 v13, v%d, v%d' % (T + 2, T + 3))
    E('v_add_f32 v14, v%d, v%d' % (T + 4, T + 5)); E('v_add_f32 v15, v%d, v%d' % (T + 6, T + 7))
    E('v_add_f32 v12, v12, v13'); E('v_add_f32 v14, v14, v15')
    E('v_mov_b32 v13, v12'); E('v_mov_b32 v15, v14')
    E('v_permlane32_swap_b32 v12, v13'); E('v_permlane32_swap_b32 v14, v15')
    E('v_add_f32 v12, v12, v13'); E('v_add_f32 v14, v14, v15')
    E('s_mov_b32 s49, 0x%x' % f32bits(1.0 / 448))
    E('v_mul_f32 v12, s49, v12')
    E('v_mul_f32 v14, s49, v14')
    E('v_fma_f32 v14, -v12, v12, v14')
    E('v_max_f32 v14, 0, v14')
    E('v_cvt_pk_bf16_f32 v13, v12, v14')
    E('v_lshlrev_b32 v12, 16, v13')
    E('v_and_b32 v14, s58, v13')
    E('v_xor_b32 v10, 0x80000000, v12')
    E('v_add_f32 v14, 0x%x, v14' % f32bits(1e-5))
    E('v_cvt_pk_bf16_f32 v14, v14, v14'); E('v_and_b32 v14, s58, v14')
    E('v_sqrt_f32 v14, v14')
    E('v_cvt_pk_bf16_f32 v14, v14, v14'); E('v_and_b32 v14, s58, v14')
    E('v_rcp_f32 v11, v14')
    E('v_fma_f32 v15, -v14, v11, 2.0'); E('v_mul_f32 v11, v11, v15')
    for o in norm_ops(0): E(o)
    lab1 = 'L_k1_ch1_%s' % E.kname; labj = 'L_k1_join_%s' % E.kname
    E('s_cmp_lg_u32 s48, 0')
    E('s_cbranch_scc1 %s' % lab1)
    vm0, lg0 = list(E.vm), list(E.lg)
    E.flush(2)
    k1_path(E, 0, st_flags, after_qkv, after_h)
    E('s_branch %s' % labj)
    E.label(lab1)
    E.vm, E.lg = list(vm0), list(lg0)
    E.flush(2)
    k1_path(E, 1, st_flags, after_qkv, after_h)
    E.label(labj)

def f32bits(x):
    import struct
    return struct.unpack('<I', struct.pack('<f', x))[0]

def k1_path(E, ch, st_flags, after_qkv, after_h):
    steps = [(1, s) for s in range(28)] + [(2, s) for s in range(28)]
    def stage(st): return st[1] >> 2 if st[0] == 1 else 7 + (st[1] >> 1)
    def tiles(st):
        if st[0] == 1: return [0, 1] if ch == 0 else [2]
        return [0, 1, 2] if ch == 0 else [3, 4, 5, 6]
    def wf(buf, ti): return WF + buf * 16 + ti * 4
    def setaddr(st):
        sb = (stage(st) % NSLOT) * SLOT
        E('v_add_u32 v9, %d, v%d' % (sb, 7 if st[0] == 1 else 8))
    def read(st, ti, t, buf):
        if st[0] == 1:
            off = (st[1] & 3) * 16 * 192 + t * 64; d2 = 768
        else:
            off = (st[1] & 1) * 3584 + t * 32; d2 = 896
        r = wf(buf, ti)
        E.lds('ds_read_b64_tr_b16 v[%d:%d], v9 offset:%d' % (r, r + 1, off), ('w', st, t))
        E.lds('ds_read_b64_tr_b16 v[%d:%d], v9 offset:%d' % (r + 2, r + 3, off + d2), ('w', st, t))
    E.vwait(('st', 0)); E('s_barrier')
    setaddr(steps[0])
    for ti, t in enumerate(tiles(steps[0])): read(steps[0], ti, t, 0)
    for idx, st in enumerate(steps):
        buf = idx & 1
        nxt = steps[idx + 1] if idx + 1 < len(steps) else None
        tl = tiles(st)
        valu = norm_ops(st[1] + 1) if (st[0] == 1 and st[1] < 27) else []
        per = (len(valu) + len(tl) - 1) // len(tl) if valu else 0
        for ti, t in enumerate(tl):
            E.lwait(('w', st, t))
            a = ACC + 16 * ti
            c = ('v[%d:%d]' % (a, a + 15)) if st[1] > 0 else '0'
            w = wf(buf, ti); x = X(st[1])
            if st[0] == 1 and t == 2:
                E('v_mfma_f32_32x32x16_bf16 v[%d:%d], v[%d:%d], v[%d:%d], %s' % (a, a + 15, x, x + 3, w, w + 3, c))
            else:
                E('v_mfma_f32_32x32x16_bf16 v[%d:%d], v[%d:%d], v[%d:%d], %s' % (a, a + 15, w, w + 3, x, x + 3, c))
            if ti == 0 and nxt is not None:
                if stage(nxt) != stage(st):
                    E.vwait(('st', stage(nxt))); E('s_barrier')
                    g = stage(st)
                    if g >= 1 and g + 9 <= 20: dma_stage(E, g + 9)
                    setaddr(nxt)
            if nxt is not None:
                ntl = tiles(nxt)
                if ti < len(ntl): read(nxt, ti, ntl[ti], buf ^ 1)
                if ti == len(tl) - 1:
                    for tj in range(len(tl), len(ntl)): read(nxt, tj, ntl[tj], buf ^ 1)
            for o in valu[ti * per:(ti + 1) * per]: E(o)
        if st == (1, 27):
            epilogue_qkv(E, ch, st_flags)
            if after_qkv: after_qkv(E)
    epilogue_h(E, ch, st_flags)
    if after_h: after_h(E)

def epilogue_qkv(E, ch, fl):
    P = T
    if ch == 0:
        for ti in range(2):
            a = ACC + 16 * ti
            for i in range(8):
                E('v_cvt_pk_bf16_f32 v%d, v%d, v%d' % (P + i, a + 2 * i, a + 2 * i + 1))
            E('v_cndmask_b32 v%d, v%d, 0, s[62:63]' % (P + 6, P + 6))
            E('v_cndmask_b32 v%d, v%d, 0, s[62:63]' % (P + 7, P + 7))
            so = '0' if ti == 0 else 's61'
            E.vmem('buffer_store_dwordx4 v[%d:%d], v240, s[%d:%d], %s offen%s' % (P, P + 3, SWS, SWS + 3, so, fl), 'stq')
            E.vmem('buffer_store_dwordx4 v[%d:%d], v240, s[%d:%d], %s offen offset:256%s' % (P + 4, P + 7, SWS, SWS + 3, so, fl), 'stq')
            P = T + 8 if ti == 0 else T
    else:
        a = ACC
        order = [0, 8, 4, 12]
        E('v_mov_b32 v12, 0x3f803f80')
        for q, b in enumerate(order):
            E('v_cvt_pk_bf16_f32 v%d, v%d, v%d' % (P + 2 * q, a + b, a + b + 1))
            E('v_cvt_pk_bf16_f32 v%d, v%d, v%d' % (P + 2 * q + 1, a + b + 2, a + b + 3))
        for i in range(8):
            E('v_cndmask_b32 v%d, v%d, v12, s[64:65]' % (P + i, P + i))
        E.vmem('buffer_store_dwordx4 v[%d:%d], v241, s[%d:%d], 0 offen%s' % (P, P + 3, SWS, SWS + 3, fl), 'stq')
        E.vmem('buffer_store_dwordx4 v[%d:%d], v241, s[%d:%d], 0 offen offset:512%s' % (P + 4, P + 7, SWS, SWS + 3, fl), 'stq')

def epilogue_h(E, ch, fl):
    tl = [0, 1, 2] if ch == 0 else [3, 4, 5, 6]
    for ti, t in enumerate(tl):
        a = ACC + 16 * ti
        G = T; U = T + 4; H = WF + 4 * ti
        for i in range(4):
            E('v_cvt_pk_bf16_f32 v%d, v%d, v%d' % (G + i, a + 2 * i, a + 2 * i + 1))
            E('v_cvt_pk_bf16_f32 v%d, v%d, v%d' % (U + i, a + 8 + 2 * i, a + 8 + 2 * i + 1))
        for i in range(4):
            E('v_lshlrev_b32 v%d, 16, v%d' % (a + 0, G + i)); E('v_and_b32 v%d, s58, v%d' % (a + 1, G + i))
            E('v_lshlrev_b32 v%d, 16, v%d' % (a + 2, U + i)); E('v_and_b32 v%d, s58, v%d' % (a + 3, U + i))
            E('v_mul_f32 v%d, v%d, v%d' % (a + 0, a + 0, a + 2)); E('v_mul_f32 v%d, v%d, v%d' % (a + 1, a + 1, a + 3))
            E('v_cvt_pk_bf16_f32 v%d, v%d, v%d' % (H + i, a + 0, a + 1))
        E('s_mov_b32 s50, %d' % (t * 1024))
        E.vmem('buffer_store_dwordx4 v[%d:%d], v242, s[%d:%d], s50 offen%s' % (H, H + 3, SWS, SWS + 3, fl), 'sth')
```

```python
from asmlib import *
from k1 import *
import math

KL = 0
VL = 24576
S0 = 32
PB = 104
QF = 140
KF = 144
VF = 160
OA = 176
BI = 184
NEG = 200
SWS2 = 40

def gen_k2_body(E, ld_flags='', st_flags='', use_dma=True, pre_wait=None, after_o=None):
    E('v_and_b32 v1, 63, v0')
    E('v_lshrrev_b32 v12, 6, v0')
    E('v_readfirstlane_b32 s46, v12')
    decode_rb_j(E)
    E('s_waitcnt lgkmcnt(0)')
    srd(E, SWS2, 22, WS_USED)
    if pre_wait: pre_wait(E)
    E('v_lshlrev_b32 v2, 4, v1')
    E('s_lshl_b32 s49, s44, 17')
    E('s_lshl_b32 s50, s45, 3')
    E('s_mul_i32 s51, s46, 3')
    for n in range(3):
        E('s_add_u32 s52, s50, s51'); E('s_add_i32 s52, s52, %d' % (n - 16)); E('s_max_i32 s52, s52, 0')
        E('s_lshl_b32 s52, s52, 10'); E('s_add_u32 s52, s52, s49'); E('s_add_u32 s52, s52, %d' % K_OFF)
        E('s_mul_i32 s53, s46, 3072');
        if use_dma:
            E('s_add_u32 m0, s53, %d' % (KL + n * 1024))
            E.vmem('buffer_load_dwordx4 v2, s[%d:%d], s52 offen lds%s' % (SWS2, SWS2 + 3, ld_flags), 'kv')
        else:
            E.vmem('buffer_load_dwordx4 v[%d:%d], v2, s[%d:%d], s52 offen%s' % (S0 + 4 * n, S0 + 4 * n + 3, SWS2, SWS2 + 3, ld_flags), 'kv')
    E('s_lshl_b32 s50, s45, 2')
    for n in range(3):
        E('s_add_u32 s52, s51, %d' % n)
        E('s_lshr_b32 s53, s52, 1'); E('s_add_u32 s53, s53, s50'); E('s_add_i32 s53, s53, -8'); E('s_max_i32 s53, s53, 0')
        E('s_lshl_b32 s53, s53, 11'); E('s_and_b32 s54, s52, 1'); E('s_lshl_b32 s54, s54, 10'); E('s_add_u32 s53, s53, s54')
        E('s_add_u32 s53, s53, s49'); E('s_add_u32 s53, s53, %d' % V_OFF)
        if use_dma:
            E('s_lshl_b32 s54, s52, 10'); E('s_add_u32 m0, s54, %d' % VL)
            E.vmem('buffer_load_dwordx4 v2, s[%d:%d], s53 offen lds%s' % (SWS2, SWS2 + 3, ld_flags), 'kv')
        else:
            E.vmem('buffer_load_dwordx4 v[%d:%d], v2, s[%d:%d], s53 offen%s' % (S0 + 12 + 4 * n, S0 + 12 + 4 * n + 3, SWS2, SWS2 + 3, ld_flags), 'kv')
    E('s_lshl_b32 s50, s45, 3'); E('s_add_u32 s50, s50, s46'); E('s_lshl_b32 s52, s50, 10'); E('s_add_u32 s52, s52, s49')
    E.vmem('buffer_load_dwordx4 v[%d:%d], v2, s[%d:%d], s52 offen%s' % (QF, QF + 3, SWS2, SWS2 + 3, ld_flags), 'q')
    E('s_lshl_b32 s52, s50, 4'); E('s_add_u32 s52, s52, s44'); E('s_lshl_b32 s52, s52, 10'); E('s_add_u32 s55, s52, %d' % O_OFF)
    E('v_and_b32 v3, 15, v1')
    E('v_lshrrev_b32 v4, 4, v1')
    E('s_and_b32 s52, s46, 1'); E('s_lshl_b32 s52, s52, 4'); E('s_add_u32 s52, s52, 256')
    E('v_add_u32 v5, s52, v3'); E('v_lshlrev_b32 v6, 2, v4'); E('v_sub_u32 v5, v5, v6')
    E('s_mov_b32 s56, 0xf149f2ca')
    E('v_mov_b32 v7, s56')
    for n in range(4): E('v_mov_b32 v%d, s56' % (NEG + n))
    E('s_movk_i32 s57, 256')
    for bi, tp in enumerate([0, 1, 16, 17]):
        for i in range(4):
            E('v_subrev_u32 v6, %d, v5' % (16 * tp + i))
            E('v_cmp_gt_u32 vcc, s57, v6')
            E('v_cndmask_b32 v%d, v7, 0, vcc' % (BI + 4 * bi + i))
    E('s_lshl_b32 s52, s45, 3'); E('s_sub_i32 s58, 16, s52'); E('s_and_b32 s52, s46, 6'); E('s_sub_i32 s58, s58, s52')
    E('s_lshr_b32 s52, s46, 1'); E('s_lshl_b32 s52, s52, 11')
    E('v_add_u32 v8, s52, v2')
    if not use_dma:
        E.vwait('kv')
        E('s_mul_i32 s53, s46, 3072'); E('v_add_u32 v9, s53, v2')
        for n in range(3):
            E.lds('ds_write_b128 v9, v[%d:%d] offset:%d' % (S0 + 4 * n, S0 + 4 * n + 3, KL + n * 1024), 'w')
            E.lds('ds_write_b128 v9, v[%d:%d] offset:%d' % (S0 + 12 + 4 * n, S0 + 12 + 4 * n + 3, VL + n * 1024), 'w')
        E('s_waitcnt vmcnt(0) lgkmcnt(0)')
    else:
        E('s_waitcnt vmcnt(0)')
    E('s_barrier')
    labs = 'L_k2_slow_%s' % E.kname; labj = 'L_k2_join_%s' % E.kname
    E('s_cmp_gt_i32 s58, 0')
    E('s_cbranch_scc1 %s' % labs)
    E.flush(0)
    lg0 = list(E.lg); vm0 = list(E.vm)
    k2_scores(E, False)
    E('s_branch %s' % labj)
    E.label(labs)
    E.lg = list(lg0); E.vm = list(vm0)
    k2_scores(E, True)
    E.label(labj)
    E.flush(8)
    k2_rest(E, st_flags)
    if after_o: after_o(E)

def k2_scores(E, slow):
    bi_of = {0: 0, 1: 1, 16: 2, 17: 3}
    for tp in range(min(3, 18)):
        E.lds('ds_read_b128 v[%d:%d], v8 offset:%d' % (KF + 4 * (tp & 3), KF + 4 * (tp & 3) + 3, KL + tp * 1024), ('k', tp))
    for tp in range(18):
        if tp + 3 < 18:
            n = tp + 3
            E.lds('ds_read_b128 v[%d:%d], v8 offset:%d' % (KF + 4 * (n & 3), KF + 4 * (n & 3) + 3, KL + n * 1024), ('k', n))
        E.lwait(('k', tp))
        k = KF + 4 * (tp & 3); s = S0 + 4 * tp
        if slow:
            l1 = E.newlabel('sl'); l2 = E.newlabel('sl')
            E('s_cmp_gt_i32 s58, %d' % tp)
            E('s_cbranch_scc1 %s' % l1)
            c = 'v[%d:%d]' % (BI + 4 * bi_of[tp], BI + 4 * bi_of[tp] + 3) if tp in bi_of else '0'
            E('v_mfma_f32_16x16x32_bf16 v[%d:%d], v[%d:%d], v[%d:%d], %s' % (s, s + 3, k, k + 3, QF, QF + 3, c))
            E('s_branch %s' % l2)
            E.lines.append(l1 + ':')
            E('v_mfma_f32_16x16x32_bf16 v[%d:%d], v[%d:%d], v[%d:%d], v[%d:%d]' % (s, s + 3, k, k + 3, QF, QF + 3, NEG, NEG + 3))
            E.lines.append(l2 + ':')
        else:
            c = 'v[%d:%d]' % (BI + 4 * bi_of[tp], BI + 4 * bi_of[tp] + 3) if tp in bi_of else '0'
            E('v_mfma_f32_16x16x32_bf16 v[%d:%d], v[%d:%d], v[%d:%d], %s' % (s, s + 3, k, k + 3, QF, QF + 3, c))

def k2_rest(E, st_flags):
    for mt in range(2):
        E.lds('ds_read_b128 v[%d:%d], v8 offset:%d' % (VF + 4 * mt, VF + 4 * mt + 3, VL + mt * 1024), ('v', 0, mt))
    n = 72
    E('v_max3_f32 v12, v%d, v%d, v%d' % (S0, S0 + 1, S0 + 2))
    E('v_max3_f32 v13, v%d, v%d, v%d' % (S0 + 3, S0 + 4, S0 + 5))
    i = 6; tog = 0
    while i + 1 < n:
        r = 12 + tog
        E('v_max3_f32 v%d, v%d, v%d, v%d' % (r, r, S0 + i, S0 + i + 1)); i += 2; tog ^= 1
    E('v_max_f32 v12, v12, v13')
    E('v_mov_b32 v13, v12'); E('v_permlane16_swap_b32 v12, v13'); E('v_max_f32 v12, v12, v13')
    E('v_mov_b32 v13, v12'); E('v_permlane32_swap_b32 v12, v13'); E('v_max_f32 v12, v12, v13')
    c = (28 ** -0.5) * math.log2(math.e)
    E('s_mov_b32 s52, 0x%x' % f32bits(c))
    E('v_mul_f32 v12, s52, v12')
    for b in range(9):
        for q in range(8):
            r = S0 + 8 * b + q
            E('v_fma_f32 v%d, v%d, s52, -v12' % (r, r))
        for q in range(8):
            r = S0 + 8 * b + q
            E('v_exp_f32 v%d, v%d' % (r, r))
        for q in range(4):
            r = S0 + 8 * b + 2 * q
            E('v_cvt_pk_bf16_f32 v%d, v%d, v%d' % (PB + 4 * b + q, r, r + 1))
        if b + 1 < 9:
            for mt in range(2):
                vf = VF + 8 * ((b + 1) & 1) + 4 * mt
                E.lds('ds_read_b128 v[%d:%d], v8 offset:%d' % (vf, vf + 3, VL + (b + 1) * 2048 + mt * 1024), ('v', b + 1, mt))
        for mt in range(2):
            E.lwait(('v', b, mt))
            vf = VF + 8 * (b & 1) + 4 * mt; o = OA + 4 * mt; p = PB + 4 * b
            cc = 'v[%d:%d]' % (o, o + 3) if b > 0 else '0'
            E('v_mfma_f32_16x16x32_bf16 v[%d:%d], v[%d:%d], v[%d:%d], %s' % (o, o + 3, vf, vf + 3, p, p + 3, cc))
    E('v_and_b32 v13, 15, v1'); E('v_add_u32 v13, 48, v13'); E('v_lshlrev_b32 v13, 2, v13')
    E.lds('ds_bpermute_b32 v14, v13, v%d' % (OA + 4), 'bp')
    E('v_cmp_le_u32 vcc, 48, v1')
    E.lwait('bp')
    E('v_rcp_f32 v14, v14')
    for i in range(8):
        E('v_mul_f32 v%d, v%d, v14' % (OA + i, OA + i))
    for i in range(4):
        E('v_cndmask_b32 v%d, v%d, 0, vcc' % (OA + 4 + i, OA + 4 + i))
    for q in range(4):
        E('v_cvt_pk_bf16_f32 v%d, v%d, v%d' % (PB + q, OA + 2 * q, OA + 2 * q + 1))
    E.vmem('buffer_store_dwordx4 v[%d:%d], v2, s[%d:%d], s55 offen%s' % (PB, PB + 3, SWS2, SWS2 + 3, st_flags), 'sto')
```

```python
from asmlib import *
from k1 import *
import math

SWD, SWO, SWS3, SX3, SOUT = 24, 28, 32, 36, 40
ACC3 = 64
HB = 128
DEPTH = 3
WF3 = 176
RING = 4096
def gen_k3_body(E, ld_flags='', wait_h=None, wait_o=None):
    E('v_and_b32 v1, 63, v0')
    E('v_lshrrev_b32 v12, 6, v0')
    E('v_readfirstlane_b32 s46, v12')
    E('s_and_b32 s44, s2, 7'); E('s_lshl_b32 s44, s44, 2'); E('s_lshr_b32 s49, s2, 3'); E('s_and_b32 s49, s49, 3'); E('s_add_u32 s44, s44, s49')
    E('s_lshr_b32 s45, s2, 5')
    E('s_waitcnt lgkmcnt(0)')
    srd(E, SWD, 16, 1792 * 896); srd(E, SWO, 8, 448 * 896); srd(E, SWS3, 22, WS_USED); srd(E, SX3, 4, 2048 * 896); srd(E, SOUT, 18, 2048 * 896)
    E('v_lshrrev_b32 v2, 5, v1')
    E('v_lshlrev_b32 v3, 4, v1')
    E('v_lshrrev_b32 v12, 2, v1'); E('v_mul_u32_u24 v4, 896, v12'); E('v_and_b32 v12, 3, v1'); E('v_lshl_add_u32 v4, v12, 4, v4')
    E('s_mul_i32 s49, s45, 112'); E('v_add_u32 v4, s49, v4')
    E('v_and_b32 v12, 15, v1'); E('v_lshrrev_b32 v13, 2, v12'); E('v_lshl_add_u32 v13, v2, 2, v13'); E('v_lshlrev_b32 v5, 6, v13')
    E('v_and_b32 v12, 3, v12'); E('v_lshl_add_u32 v5, v12, 3, v5'); E('v_bfe_u32 v12, v1, 4, 1'); E('v_lshl_add_u32 v5, v12, 5, v5')
    E('s_mul_i32 s47, s46, %d' % (DEPTH * RING)); E('v_add_u32 v5, s47, v5')
    E('v_bfe_u32 v12, v1, 4, 1'); E('v_lshlrev_b32 v6, 14, v12'); E('v_lshl_add_u32 v6, v2, 8, v6'); E('v_and_b32 v12, 15, v1'); E('v_lshl_add_u32 v6, v12, 4, v6')
    lE = 'L_k3_E_%s' % E.kname; l9 = 'L_k3_D9_%s' % E.kname; lj = 'L_k3_join_%s' % E.kname
    E('s_cmp_ge_u32 s46, 6'); E('s_cbranch_scc1 %s' % lE)
    E('s_cmp_ge_u32 s46, 2'); E('s_cbranch_scc1 %s' % l9)
    vm0, lg0 = list(E.vm), list(E.lg)
    E('s_mul_i32 s48, s46, 10')
    E.flush(0)
    k3_stream(E, 'D', 10, ld_flags, wait_h); E('s_branch %s' % lj)
    E.label(l9); E.vm, E.lg = list(vm0), list(lg0)
    E('s_mul_i32 s48, s46, 9'); E('s_add_u32 s48, s48, 2')
    k3_stream(E, 'D', 9, ld_flags, wait_h); E('s_branch %s' % lj)
    E.label(lE); E.vm, E.lg = list(vm0), list(lg0)
    E('s_sub_u32 s48, s46, 6'); E('s_lshl_b32 s48, s48, 3')
    k3_stream(E, 'E', 8, ld_flags, wait_o)
    E.label(lj)
    E.flush(12)
    k3_reduce(E)

def k3_stream(E, kind, nu, ld_flags, waitfn):
    if kind == 'D':
        E('s_mul_i32 s50, s48, %d' % (32 * 896))
        E('s_mul_i32 s51, s44, 224'); E('s_lshl_b32 s52, s48, 1'); E('s_add_u32 s51, s51, s52'); E('s_lshl_b32 s51, s51, 10'); E('s_add_u32 s51, s51, %d' % H_OFF)
        wsrd = SWD; wstep = 32 * 896
    else:
        E('s_mul_i32 s50, s48, %d' % (28 * 896))
        E('s_lshl_b32 s51, s44, 6'); E('s_add_u32 s51, s51, s48'); E('s_lshl_b32 s51, s51, 10'); E('s_add_u32 s51, s51, %d' % O_OFF)
        wsrd = SWO; wstep = 28 * 896
    def issue_w(u):
        slot = u % DEPTH
        for ct in range(2):
            for half in range(2):
                E('s_add_u32 m0, s47, %d' % (slot * RING + ct * 2048 + half * 1024))
                E('s_add_u32 s52, s50, %d' % (u * wstep + half * 16 * 896 + ct * 64))
                E.vmem('buffer_load_dwordx4 v4, s[%d:%d], s52 offen lds' % (wsrd, wsrd + 3), ('u', u))
    def issue_b(u):
        slot = u % DEPTH
        for e in range(2):
            for tt in range(2):
                r = HB + slot * 16 + (e * 2 + tt) * 4
                if kind == 'D':
                    E('s_add_u32 s52, s51, %d' % ((tt * 112 + 2 * u + e) * 1024))
                    E.vmem('buffer_load_dwordx4 v[%d:%d], v3, s[%d:%d], s52 offen%s' % (r, r + 3, SWS3, SWS3 + 3, ld_flags), ('u', u))
                else:
                    E('s_add_u32 s52, s51, %d' % ((tt * 32 + u) * 1024 + e * 512))
                    E.vmem('buffer_load_dwordx4 v[%d:%d], v6, s[%d:%d], s52 offen%s' % (r, r + 3, SWS3, SWS3 + 3, ld_flags), ('u', u))
    for u in range(min(DEPTH, nu)): issue_w(u)
    if waitfn: waitfn(E)
    for u in range(min(DEPTH, nu)): issue_b(u)
    for u in range(nu):
        slot = u % DEPTH
        E.vwait(('u', u))
        for e in range(2):
            for ct in range(2):
                w = WF3 + e * 8 + ct * 4
                if kind == 'D': o1 = e * 16 * 64; d2 = 8 * 64
                else: o1 = e * 8 * 64; d2 = 16 * 64
                off = slot * RING + ct * 2048 + o1
                E.lds('ds_read_b64_tr_b16 v[%d:%d], v5 offset:%d' % (w, w + 1, off), ('w', u, e, ct))
                E.lds('ds_read_b64_tr_b16 v[%d:%d], v5 offset:%d' % (w + 2, w + 3, off + d2), ('w', u, e, ct))
        for e in range(2):
            for ct in range(2):
                E.lwait(('w', u, e, ct))
                w = WF3 + e * 8 + ct * 4
                for tt in range(2):
                    a = ACC3 + (ct * 2 + tt) * 16; b = HB + slot * 16 + (e * 2 + tt) * 4
                    c = 'v[%d:%d]' % (a, a + 15) if (u > 0 or e > 0) else '0'
                    E('v_mfma_f32_32x32x16_bf16 v[%d:%d], v[%d:%d], v[%d:%d], %s' % (a, a + 15, w, w + 3, b, b + 3, c))
        if u + DEPTH < nu:
            issue_w(u + DEPTH); issue_b(u + DEPTH)

def k3_reduce(E):
    E('v_and_b32 v7, 31, v0'); E('v_bfe_u32 v8, v0, 5, 2'); E('v_bfe_u32 v9, v0, 7, 1'); E('v_lshrrev_b32 v10, 8, v0')
    E('s_lshl_b32 s49, s44, 6'); E('v_lshl_add_u32 v11, v10, 5, v7'); E('v_add_u32 v11, s49, v11'); E('v_mul_u32_u24 v11, 896, v11')
    E('v_lshlrev_b32 v12, 5, v9'); E('v_lshl_add_u32 v12, v8, 3, v12')
    E('v_cmp_gt_u32 s[62:63], 56, v12')
    E('s_mul_i32 s49, s45, 112'); E('v_lshl_add_u32 v11, v12, 1, v11'); E('v_add_u32 v11, s49, v11')
    E.vmem('buffer_load_dwordx4 v[16:19], v11, s[%d:%d], 0 offen' % (SX3, SX3 + 3), 'x')
    E('s_barrier')
    E('s_lshl_b32 s49, s46, 14'); E('v_add_u32 v13, s49, v3')
    for t in range(4):
        for a in range(4):
            r = ACC3 + t * 16 + a * 4
            E.lds('ds_write_b128 v13, v[%d:%d] offset:%d' % (r, r + 3, t * 4096 + a * 1024), 'pw')
    E('s_waitcnt lgkmcnt(0)')
    E('s_barrier')
    E('v_lshlrev_b32 v13, 1, v9'); E('v_add_u32 v13, v13, v10'); E('v_lshl_add_u32 v13, v13, 2, v8'); E('v_lshlrev_b32 v13, 10, v13')
    E('v_lshl_add_u32 v13, v7, 4, v13')
    E('v_add_u32 v14, 0x10000, v13')
    R0 = 64
    for w in range(8):
        for hh in range(2):
            r = R0 + (w * 2 + hh) * 4
            base = 13 if w < 4 else 14
            E.lds('ds_read_b128 v[%d:%d], v%d offset:%d' % (r, r + 3, base, (w & 3) * 16384 + hh * 512), ('pr', w))
    F = 32; S = 40
    E.lwait(('pr', 1))
    for i in range(8): E('v_add_f32 v%d, v%d, v%d' % (F + i, R0 + i, R0 + 8 + i))
    for w in range(2, 6):
        E.lwait(('pr', w))
        for i in range(8): E('v_add_f32 v%d, v%d, v%d' % (F + i, F + i, R0 + w * 8 + i))
    E.lwait(('pr', 7))
    for i in range(8): E('v_add_f32 v%d, v%d, v%d' % (S + i, R0 + 48 + i, R0 + 56 + i))
    E('s_mov_b32 s58, 0xffff0000'); E('s_mov_b32 s59, 0x%x' % f32bits(-math.log2(math.e)))
    for i in range(4):
        E('v_cvt_pk_bf16_f32 v%d, v%d, v%d' % (48 + i, F + 2 * i, F + 2 * i + 1))
        E('v_cvt_pk_bf16_f32 v%d, v%d, v%d' % (52 + i, S + 2 * i, S + 2 * i + 1))
    for i in range(4):
        E('v_lshlrev_b32 v%d, 16, v%d' % (F + 2 * i, 48 + i)); E('v_and_b32 v%d, s58, v%d' % (F + 2 * i + 1, 48 + i))
        E('v_lshlrev_b32 v%d, 16, v%d' % (S + 2 * i, 52 + i)); E('v_and_b32 v%d, s58, v%d' % (S + 2 * i + 1, 52 + i))
    for i in range(8): E('v_mul_f32 v%d, s59, v%d' % (48 + i, F + i))
    for i in range(8): E('v_exp_f32 v%d, v%d' % (48 + i, 48 + i))
    for i in range(8): E('v_add_f32 v%d, 1.0, v%d' % (48 + i, 48 + i))
    for i in range(8): E('v_rcp_f32 v%d, v%d' % (48 + i, 48 + i))
    for i in range(8): E('v_mul_f32 v%d, v%d, v%d' % (F + i, F + i, 48 + i))
    for i in range(4): E('v_cvt_pk_bf16_f32 v%d, v%d, v%d' % (48 + i, F + 2 * i, F + 2 * i + 1))
    for i in range(4):
        E('v_lshlrev_b32 v%d, 16, v%d' % (F + 2 * i, 48 + i)); E('v_and_b32 v%d, s58, v%d' % (F + 2 * i + 1, 48 + i))
    for i in range(8): E('v_mul_f32 v%d, v%d, v%d' % (F + i, F + i, S + i))
    for i in range(4): E('v_cvt_pk_bf16_f32 v%d, v%d, v%d' % (48 + i, F + 2 * i, F + 2 * i + 1))
    E.vwait('x')
    for i in range(4):
        E('v_lshlrev_b32 v%d, 16, v%d' % (F + 2 * i, 48 + i)); E('v_and_b32 v%d, s58, v%d' % (F + 2 * i + 1, 48 + i))
        E('v_lshlrev_b32 v%d, 16, v%d' % (S + 2 * i, 16 + i)); E('v_and_b32 v%d, s58, v%d' % (S + 2 * i + 1, 16 + i))
    for i in range(8): E('v_add_f32 v%d, v%d, v%d' % (F + i, F + i, S + i))
    for i in range(4): E('v_cvt_pk_bf16_f32 v%d, v%d, v%d' % (48 + i, F + 2 * i, F + 2 * i + 1))
    E('s_mov_b64 exec, s[62:63]')
    E.vmem('buffer_store_dwordx4 v[48:51], v11, s[%d:%d], 0 offen' % (SOUT, SOUT + 3), 'out')
    E('s_mov_b64 exec, -1')
```

```python
import sys
sys.path.insert(0, 'gen')
from asmlib import *
from k1 import *
from k2 import *
from k3 import *
HDR = open('recurrent_scan__sliding_block__glu_gated_bilinear__prompt.s.ref').read().split('; Override')[0]
def kernel(name, body, nvgpr):
    E = Emit(); E.kname = name
    E.raw('.globl %s_kernel' % name); E.raw('.p2align 8'); E.raw('.type %s_kernel,@function' % name); E.raw('%s_kernel:' % name)
    common_prologue(E)
    body(E)
    E.label('L_exit_%s' % name)
    E('s_endpgm')
    desc = '''.amdhsa_kernel %s_kernel
  .amdhsa_next_free_vgpr %d
  .amdhsa_next_free_sgpr 102
  .amdhsa_accum_offset %d
  .amdhsa_group_segment_fixed_size 0
  .amdhsa_kernarg_size 80
  .amdhsa_user_sgpr_count 2
  .amdhsa_user_sgpr_kernarg_segment_ptr 1
  .amdhsa_system_sgpr_workgroup_id_x 1
.end_amdhsa_kernel
''' % (name, nvgpr, nvgpr)
    return E.text(), desc
def main(out):
    ks = [('k1', gen_k1_body, 256, 148480), ('k2', gen_k2_body, 208, 49152), ('k3', gen_k3_body, 192, 131072)]
    s = HDR
    for n, b, v, lds in ks:
        s += '; @launch kernel=%s_kernel grid=(256,1,1) block=(512,1,1) lds=%d\n' % (n, lds)
    s += '.amdgcn_target "amdgcn-amd-amdhsa--gfx950"\n.text\n'
    descs = ''
    for n, b, v, lds in ks:
        t, d = kernel(n, b, v)
        s += t; descs += '.p2align 6\n' + d
    s += '.section .rodata,"a"\n' + descs
    open(out, 'w').write(s)
main(sys.argv[1] if len(sys.argv) > 1 else 'recurrent_scan__sliding_block__glu_gated_bilinear__prompt.s')
```

```python
import re

REG_RE = re.compile(r'\b([vsa])\[(\d+):(\d+)\]|\b([vsa])(\d+)\b')

def regs_of(tok):
    out = []
    for m in REG_RE.finditer(tok):
        if m.group(1):
            out += [(m.group(1), i) for i in range(int(m.group(2)), int(m.group(3)) + 1)]
        else:
            out.append((m.group(4), int(m.group(5))))
    if re.search(r'\bvcc\b', tok): out += [('s', 106), ('s', 107)]
    if re.search(r'\bvcc_lo\b', tok): out += [('s', 106)]
    if re.search(r'\bvcc_hi\b', tok): out += [('s', 107)]
    if re.search(r'\bm0\b', tok): out += [('m', 0)]
    if re.search(r'\bexec(_lo|_hi)?\b', tok): out += [('e', 0)]
    return out

TRANS = ('v_exp_f32', 'v_log_f32', 'v_rcp_f32', 'v_rsq_f32', 'v_sqrt_f32', 'v_sin_f32', 'v_cos_f32')

class Ins:
    __slots__ = ('op', 'text', 'w', 'r', 'cls', 'passes', 'srcc', 'nstates', 'lds_dma', 'widestore', 'data')

def classify(text):
    t = text.split(';')[0].strip()
    parts = t.split(None, 1)
    op = parts[0]
    ops = [x.strip() for x in (parts[1].split(',') if len(parts) > 1 else [])]
    I = Ins(); I.op = op; I.text = text; I.w = []; I.r = []; I.passes = 0; I.srcc = []; I.nstates = 1
    I.lds_dma = False; I.widestore = False; I.data = []
    if op == 's_nop':
        I.cls = 'nop'; I.nstates = int(ops[0], 0) + 1; return I
    if op.startswith('v_mfma'):
        I.cls = 'mfma'; I.passes = 8 if '32x32' in op else 4
        I.w = regs_of(ops[0]); I.r = regs_of(ops[1]) + regs_of(ops[2]); I.srcc = regs_of(ops[3]); return I
    if op.startswith('buffer_') or op.startswith('global_'):
        I.cls = 'vmem'
        allr = []
        if 'store' in op:
            if op.startswith('buffer_'):
                I.data = regs_of(ops[0]); I.r = I.data + sum([regs_of(x) for x in ops[1:]], [])
            else:
                I.data = regs_of(ops[1]); I.r = regs_of(ops[0]) + I.data + sum([regs_of(x) for x in ops[2:]], [])
            I.widestore = ('x4' in op or 'x3' in op)
        elif 'atomic' in op:
            I.r = sum([regs_of(x) for x in ops], [])
            if 'sc0' in t: I.w = regs_of(ops[0]) if op.startswith('buffer_') else regs_of(ops[0])
        elif re.search(r'\blds\b', t) or '_lds_' in op:
            I.lds_dma = True; I.r = sum([regs_of(x) for x in ops], []) + [('m', 0)]
        elif op.startswith('buffer_wbl2') or op.startswith('buffer_inv'):
            pass
        else:
            I.w = regs_of(ops[0]); I.r = sum([regs_of(x) for x in ops[1:]], [])
        return I
    if op.startswith('ds_'):
        I.cls = 'ds'
        if 'write' in op:
            I.r = sum([regs_of(x) for x in ops], [])
        else:
            I.w = regs_of(ops[0]); I.r = sum([regs_of(x) for x in ops[1:]], [])
        return I
    if op.startswith('v_'):
        I.cls = 'valu'
        if op.startswith('v_dot2'): I.cls = 'dot'
        elif op in TRANS: I.cls = 'trans'
        elif op.startswith('v_permlane'): I.cls = 'perm'
        elif op.startswith('v_readfirstlane') or op.startswith('v_readlane'): I.cls = 'rdlane'
        if op.startswith('v_cmp'):
            I.w = regs_of(ops[0]); I.r = sum([regs_of(x) for x in ops[1:]], [])
        elif op.startswith('v_permlane') and 'swap' in op:
            I.w = regs_of(ops[0]) + regs_of(ops[1]); I.r = I.w[:]
        elif op in ('v_add_co_u32', 'v_sub_co_u32', 'v_addc_co_u32', 'v_subrev_co_u32'):
            I.w = regs_of(ops[0]) + regs_of(ops[1]); I.r = sum([regs_of(x) for x in ops[2:]], [])
        else:
            I.w = regs_of(ops[0]); I.r = sum([regs_of(x) for x in ops[1:]], [])
            if op.startswith('v_fmac') or op.startswith('v_dot2c'): I.r += I.w
        if op.startswith('v_cndmask') and len(ops) == 3: I.r += [('s', 106), ('s', 107)]
        return I
    if op.startswith('s_'):
        I.cls = 'salu'
        if op.startswith('s_cmp') or op.startswith('s_cbranch') or op in ('s_branch', 's_barrier', 's_waitcnt', 's_endpgm', 's_setprio', 's_sleep', 's_set_gpr_idx_on', 's_set_gpr_idx_off'):
            I.r = sum([regs_of(x) for x in ops], [])
        else:
            I.w = regs_of(ops[0]); I.r = sum([regs_of(x) for x in ops[1:]], [])
            if 'saveexec' in op: I.w += [('e', 0)]
        return I
    raise ValueError("unknown op " + text)

class Emit:
    def __init__(self):
        self.lines = []
        self.hist = []
        self.vm = []
        self.lg = []
        self.auto = True
        self.uid = 0
        self.nops_inserted = 0
    def raw(self, s): self.lines.append(s)
    def comment(self, s): self.lines.append('    ; ' + s)
    def label(self, name):
        self.lines.append(name + ':')
        self.flush()
    def flush(self, n=0):
        if n: self._push(classify('s_nop %d' % (n - 1)))
        self.hist = []
    def newlabel(self, base):
        self.uid += 1
        return 'L_%s_%d' % (base, self.uid)
    def _push(self, I):
        self.lines.append('    ' + I.text)
        self.hist.append(I)
        if len(self.hist) > 40: self.hist.pop(0)
    def need(self, I):
        need = 0
        dist = 0
        R = set(I.r); W = set(I.w); C = set(I.srcc)
        isvalu = I.cls in ('valu', 'dot', 'trans', 'perm', 'rdlane')
        for P in reversed(self.hist):
            PW = set(P.w)
            req = 0
            pvalu = P.cls in ('valu', 'dot', 'trans', 'perm', 'rdlane')
            if P.cls == 'mfma':
                if I.cls == 'mfma':
                    if PW & R: req = max(req, 8 if P.passes == 4 else 12)
                    if PW & C:
                        if not (PW == C and P.passes == I.passes): req = max(req, 6 if P.passes == 4 else 10)
                    if (PW & W) and not (PW == set(I.w) and (PW & C)):
                        req = max(req, 6 if P.passes == 4 else 10)
                else:
                    if PW & (R | W): req = max(req, 8 if P.passes == 4 else 12)
                    if isvalu and (set(P.srcc) & W): req = max(req, 3 if P.passes == 4 else 7)
            if pvalu:
                vw = {x for x in PW if x[0] in 'va'}
                sw = {x for x in PW if x[0] == 's'}
                if I.cls == 'mfma' and (vw & (R | C)): req = max(req, 2)
                if P.cls == 'dot' and (vw & (R | W)):
                    if not (I.cls == 'dot' and I.op == P.op and not (vw & set(regs_ab(I)))): req = max(req, 3)
                if P.cls == 'trans' and isvalu and I.cls != 'trans' and (vw & R): req = max(req, 1)
                if I.cls == 'rdlane' and (vw & R): req = max(req, 1)
                if I.cls == 'perm' and (vw & R): req = max(req, 2)
                if isvalu and (sw & R): req = max(req, 2)
                if I.cls == 'rdlane' and (sw & R): req = max(req, 4)
                if I.cls == 'vmem' and (sw & R): req = max(req, 5)
                if I.cls == 'salu' and (sw & R): req = max(req, 1)
                if 'dpp' in I.text and (vw & R): req = max(req, 2)
            if P.cls == 'vmem' and P.widestore and (set(P.data) & W):
                req = max(req, 2)
            if P.cls == 'salu' and ('m', 0) in PW and I.lds_dma: req = max(req, 1)
            if req > dist: need = max(need, req - dist)
            dist += P.nstates
            if dist >= 20: break
        return need
    def __call__(self, text):
        for t in text.strip().split('\n'):
            t = t.strip()
            if not t or t.startswith(';'): continue
            I = classify(t)
            if self.auto:
                n = self.need(I)
                while n > 0:
                    k = min(n, 16)
                    self._push(classify('s_nop %d' % (k - 1))); self.nops_inserted += k
                    n -= k
            self._push(I)
    def vmem(self, text, tag=None):
        self(text); self.vm.append(tag)
    def vwait(self, tag, extra=''):
        idx = max(i for i, t in enumerate(self.vm) if t == tag or t == ('phantom', tag))
        if self.vm[idx] == ('phantom', tag): return
        n = sum(1 for t in self.vm[idx + 1:] if not (isinstance(t, tuple) and len(t) == 2 and t[0] == 'phantom'))
        self('s_waitcnt vmcnt(%d)%s' % (min(n, 63), extra))
    def lds(self, text, tag=None):
        self(text); self.lg.append(tag)
    def lwait(self, tag):
        idx = max(i for i, t in enumerate(self.lg) if t == tag)
        n = len(self.lg) - 1 - idx
        self('s_waitcnt lgkmcnt(%d)' % min(n, 15))
    def stamp(self, i):
        if not getattr(self, 'stamps', False): return
        self('s_memtime s[%d:%d]' % (66 + 2 * i, 67 + 2 * i))
        self('s_waitcnt lgkmcnt(0)')
        self.nstamp = max(getattr(self, 'nstamp', 0), i + 1)
    def dump_stamps(self, wsptr=22, wave='s46', base=32 << 20):
        if not getattr(self, 'stamps', False): return
        self('s_mov_b32 s60, s%d' % wsptr); self('s_and_b32 s61, s%d, 0xffff' % (wsptr + 1)); self('s_mov_b32 s62, 0x4000000'); self('s_mov_b32 s63, 0x00020000')
        self('s_lshl_b32 s59, s2, 3'); self('s_add_u32 s59, s59, %s' % wave); self('s_lshl_b32 s59, s59, 6'); self('s_add_u32 s59, s59, %d' % base)
        self('v_mov_b32 v0, 0')
        for i in range(16):
            self('v_writelane_b32 v0, s%d, %d' % (66 + 2 * i, i))
        self('s_nop 4')
        self('v_mbcnt_lo_u32_b32 v1, -1, 0'); self('v_mbcnt_hi_u32_b32 v1, -1, v1'); self('v_lshlrev_b32 v2, 2, v1')
        self('v_cmp_gt_u32 vcc, 16, v1'); self('s_and_saveexec_b64 s[64:65], vcc')
        self('buffer_store_dword v0, v2, s[60:63], s59 offen')
        self('s_mov_b64 exec, s[64:65]')
    def text(self): return '\n'.join(self.lines) + '\n'

def regs_ab(I):
    t = I.text.split(';')[0].strip().split(None, 1)[1].split(',')
    return regs_of(t[1]) + regs_of(t[2])

def vr(b, n=1):
    return 'v%d' % b if n == 1 else 'v[%d:%d]' % (b, b + n - 1)
def sr(b, n=1):
    return 's%d' % b if n == 1 else 's[%d:%d]' % (b, b + n - 1)
```

```python
from asmlib import *

Q_OFF = 0
K_OFF = 2 << 20
V_OFF = 4 << 20
H_OFF = 6 << 20
O_OFF = 14 << 20
WS_USED = 16 << 20

SLOT = 14848
NSLOT = 10
UPOFF = 7168 + 128
XSTAGE = 114688
def slot_addr(g):
    i = g % NSLOT
    return XSTAGE + i * SLOT if i < 3 else (i - 3) * SLOT
K1_LDS = XSTAGE + 3 * SLOT

def common_prologue(E, nwg=256):
    E('s_cmp_ge_u32 s2, %d' % nwg)
    E('s_cbranch_scc1 L_exit_%s' % E.kname)
    E('s_load_dwordx16 s[4:19], s[0:1], 0')
    E('s_load_dwordx4 s[20:23], s[0:1], 64')

def srd(E, d, p, nbytes):
    E('s_mov_b32 s%d, s%d' % (d, p))
    E('s_and_b32 s%d, s%d, 0xffff' % (d + 1, p + 1))
    E('s_mov_b32 s%d, 0x%x' % (d + 2, nbytes))
    E('s_mov_b32 s%d, 0x00020000' % (d + 3))

def decode_rb_j(E):
    E('s_and_b32 s49, s2, 7')
    E('s_lshr_b32 s50, s2, 3')
    E('s_and_b32 s44, s49, 3')
    E('s_lshl_b32 s44, s44, 2')
    E('s_and_b32 s51, s50, 3')
    E('s_add_u32 s44, s44, s51')
    E('s_lshr_b32 s45, s49, 2')
    E('s_lshl_b32 s45, s45, 3')
    E('s_lshr_b32 s51, s50, 2')
    E('s_add_u32 s45, s45, s51')

XB = 16
XR = 128
ACC = 128
WF = 192
T = 224
SX, SWQ, SWG, SWU, SWS = 24, 28, 32, 36, 40

def X(s): return XB + 4 * s

def norm_ops(x, nm, rr):
    ops = []
    for i in range(4):
        ops.append('v_dot2_f32_bf16 v%d, v%d, s56, v%d' % (T + 2 * i, x + i, nm))
        ops.append('v_dot2_f32_bf16 v%d, v%d, s57, v%d' % (T + 2 * i + 1, x + i, nm))
    for i in range(4):
        ops.append('v_cvt_pk_bf16_f32 v%d, v%d, v%d' % (T + 8 + i, T + 2 * i, T + 2 * i + 1))
    for i in range(4):
        ops.append('v_lshlrev_b32 v%d, 16, v%d' % (T + 2 * i, T + 8 + i))
        ops.append('v_and_b32 v%d, s58, v%d' % (T + 2 * i + 1, T + 8 + i))
    for i in range(8):
        ops.append('v_mul_f32 v%d, v%d, v%d' % (T + i, T + i, rr))
    for i in range(4):
        ops.append('v_cvt_pk_bf16_f32 v%d, v%d, v%d' % (x + i, T + 2 * i, T + 2 * i + 1))
    return ops

def dma_stage(E, g):
    sb = slot_addr(g)
    if g < 7:
        E('s_mov_b64 exec, s[52:53]')
        for n in range(2):
            E('s_add_u32 m0, s59, %d' % (sb + n * 768))
            E('s_mov_b32 s50, %d' % (g * 64 * 2688 + n * 4 * 2688))
            E.vmem('buffer_load_dwordx4 v5, s[%d:%d], s50 offen lds' % (SWQ, SWQ + 3), ('st', g))
        E('s_mov_b64 exec, -1')
    else:
        tau = g - 7
        E('s_mov_b64 exec, s[54:55]')
        E('s_mov_b32 s50, %d' % (tau * 32 * 3584))
        E('s_add_u32 m0, s60, %d' % sb)
        E.vmem('buffer_load_dwordx4 v6, s[%d:%d], s50 offen lds' % (SWG, SWG + 3), ('st', g))
        E('s_add_u32 m0, s60, %d' % (sb + UPOFF))
        E.vmem('buffer_load_dwordx4 v6, s[%d:%d], s50 offen lds' % (SWU, SWU + 3), ('st', g))
        E('s_mov_b64 exec, -1')

def gen_k1_body(E, st_flags='', after_qkv=None, after_h=None):
    E.stamp(0)
    E('v_and_b32 v1, 63, v0')
    E('v_lshrrev_b32 v12, 6, v0')
    E('v_lshrrev_b32 v2, 5, v1')
    E('v_and_b32 v3, 31, v1')
    E('v_readfirstlane_b32 s46, v12')
    decode_rb_j(E)
    E('s_and_b32 s47, s46, 3')
    E('s_lshr_b32 s48, s46, 2')
    E('s_mov_b32 s52, -1'); E('s_mov_b32 s53, 0xffff')
    E('s_mov_b32 s54, -1'); E('s_mov_b32 s55, 0xffffff')
    E('s_mov_b32 s56, 0x00003f80'); E('s_mov_b32 s57, 0x3f800000'); E('s_mov_b32 s58, 0xffff0000')
    E('s_mul_i32 s59, s46, 1536'); E('s_mul_i32 s60, s46, 896')
    E('s_lshl_b32 s49, s45, 7'); E('s_lshl_b32 s50, s46, 4'); E('s_add_u32 s49, s49, s50')
    E('v_lshrrev_b32 v12, 3, v1'); E('v_add_u32 v4, s49, v12'); E('v_mul_u32_u24 v4, 896, v4')
    E('v_and_b32 v13, 7, v1'); E('v_lshl_add_u32 v4, v13, 4, v4')
    E('v_add_u32 v9, %d, v4' % (8 * 896))
    E('s_waitcnt lgkmcnt(0)')
    srd(E, SX, 4, 2048 * 896); srd(E, SWQ, 6, 448 * 2688); srd(E, SWG, 12, 448 * 3584); srd(E, SWU, 14, 448 * 3584)
    srd(E, SWS, 22, WS_USED)
    for rho in range(2):
        for t in range(7):
            r = XR + (rho * 7 + t) * 4
            E.vmem('buffer_load_dwordx4 v[%d:%d], v%d, s[%d:%d], 0 offen offset:%d' % (r, r + 3, 4 if rho == 0 else 9, SX, SX + 3, t * 128), 'x')
    E('v_mul_u32_u24 v12, 43, v1'); E('v_lshrrev_b32 v12, 9, v12')
    E('v_mul_u32_u24 v13, 12, v12'); E('v_sub_u32 v13, v1, v13')
    E('s_lshl_b32 s49, s46, 3'); E('v_add_u32 v12, s49, v12')
    E('v_mul_u32_u24 v5, 2688, v12')
    E('v_lshrrev_b32 v14, 2, v13'); E('v_mul_u32_u24 v14, 896, v14'); E('v_add_u32 v5, v5, v14')
    E('v_and_b32 v14, 3, v13'); E('v_lshl_add_u32 v5, v14, 4, v5')
    E('s_mul_i32 s49, s44, 56'); E('v_add_u32 v5, s49, v5')
    E('v_mul_u32_u24 v12, 37, v1'); E('v_lshrrev_b32 v12, 9, v12')
    E('v_mul_u32_u24 v13, 14, v12'); E('v_sub_u32 v13, v1, v13')
    E('s_lshl_b32 s49, s46, 2'); E('v_add_u32 v12, s49, v12')
    E('v_mul_u32_u24 v6, 3584, v12'); E('v_lshl_add_u32 v6, v13, 4, v6')
    E('s_mul_i32 s49, s44, 224'); E('v_add_u32 v6, s49, v6')
    for g in range(3):
        dma_stage(E, g)
    E('v_and_b32 v12, 15, v1'); E('v_lshrrev_b32 v13, 2, v12'); E('v_lshl_add_u32 v13, v2, 3, v13')
    E('v_and_b32 v12, 3, v12'); E('v_lshlrev_b32 v12, 3, v12')
    E('v_bfe_u32 v14, v1, 4, 1')
    E('v_mul_u32_u24 v7, 192, v13'); E('v_add_u32 v7, v7, v12'); E('v_lshl_add_u32 v7, v14, 5, v7')
    E('v_mul_u32_u24 v8, 224, v13'); E('v_add_u32 v8, v8, v12'); E('v_mul_u32_u24 v14, %d, v14' % UPOFF); E('v_add_u32 v8, v8, v14')
    E('s_lshl_b32 s49, s45, 7'); E('s_lshl_b32 s50, s47, 5'); E('s_add_u32 s49, s49, s50')
    E('v_add_u32 v12, s49, v3')
    E('v_lshrrev_b32 v13, 4, v12'); E('v_lshlrev_b32 v240, 10, v13')
    E('v_and_b32 v13, 15, v12'); E('v_lshl_add_u32 v240, v13, 4, v240')
    E('v_lshl_add_u32 v240, v2, 9, v240')
    E('s_lshl_b32 s50, s44, 17'); E('v_add_u32 v240, s50, v240')
    E('s_lshl_b32 s49, s45, 2'); E('s_add_u32 s49, s49, s47'); E('s_lshl_b32 s51, s49, 11'); E('s_add_u32 s51, s51, s50')
    E('s_add_u32 s51, s51, %d' % V_OFF)
    E('v_lshrrev_b32 v13, 4, v3'); E('v_lshlrev_b32 v241, 10, v13'); E('v_and_b32 v13, 15, v3'); E('v_lshl_add_u32 v241, v13, 4, v241')
    E('v_lshl_add_u32 v241, v2, 8, v241'); E('v_add_u32 v241, s51, v241')
    E('s_mul_i32 s51, s49, 112'); E('s_mul_i32 s50, s44, 7'); E('s_add_u32 s51, s51, s50'); E('s_lshl_b32 s51, s51, 10')
    E('s_add_u32 s51, s51, %d' % H_OFF)
    E('v_lshlrev_b32 v242, 4, v1'); E('v_add_u32 v242, s51, v242')
    E('v_cmp_le_u32 s[62:63], 32, v1')
    E('v_cmp_le_u32 s[64:65], 28, v3')
    E('s_mov_b32 s61, %d' % K_OFF)
    E.stamp(1)
    E.vwait('x')
    E.stamp(2)
    E('s_mov_b32 s49, 0x3f803f80')
    for rho in range(2):
        A = T + rho * 4
        for t in range(7):
            for i in range(4):
                d = XR + (rho * 7 + t) * 4 + i
                first = (t == 0 and i < 2)
                E('v_dot2_f32_bf16 v%d, v%d, s49, %s' % (A + (i & 1), d, '0' if first else 'v%d' % (A + (i & 1))))
                E('v_dot2_f32_bf16 v%d, v%d, v%d, %s' % (A + 2 + (i & 1), d, d, '0' if first else 'v%d' % (A + 2 + (i & 1))))
    for rho in range(2):
        A = T + rho * 4
        E('v_add_f32 v%d, v%d, v%d' % (A, A, A + 1)); E('v_add_f32 v%d, v%d, v%d' % (A + 2, A + 2, A + 3))
    for rho in range(2):
        for q in (0, 2):
            r = T + rho * 4 + q
            E('v_add_f32_dpp v%d, v%d, v%d quad_perm:[1,0,3,2] row_mask:0xf bank_mask:0xf' % (r, r, r))
    for rho in range(2):
        for q in (0, 2):
            r = T + rho * 4 + q
            E('v_add_f32_dpp v%d, v%d, v%d quad_perm:[2,3,0,1] row_mask:0xf bank_mask:0xf' % (r, r, r))
    for rho in range(2):
        for q in (0, 2):
            r = T + rho * 4 + q
            E('v_add_f32_dpp v%d, v%d, v%d row_half_mirror row_mask:0xf bank_mask:0xf' % (r, r, r))
    E('s_mov_b32 s49, 0x%x' % f32bits(1.0 / 448))
    for rho in range(2):
        A = T + rho * 4; nm = 10 + 2 * rho; rr = 11 + 2 * rho
        E('v_mul_f32 v%d, s49, v%d' % (A, A))
        E('v_mul_f32 v%d, s49, v%d' % (A + 2, A + 2))
        E('v_fma_f32 v%d, -v%d, v%d, v%d' % (A + 2, A, A, A + 2))
        E('v_max_f32 v%d, 0, v%d' % (A + 2, A + 2))
        E('v_cvt_pk_bf16_f32 v%d, v%d, v%d' % (A + 1, A, A + 2))
        E('v_lshlrev_b32 v%d, 16, v%d' % (A, A + 1))
        E('v_and_b32 v%d, s58, v%d' % (A + 2, A + 1))
        E('v_xor_b32 v%d, 0x80000000, v%d' % (nm, A))
        E('v_add_f32 v%d, 0x%x, v%d' % (A + 2, f32bits(1e-5), A + 2))
        E('v_cvt_pk_bf16_f32 v%d, v%d, v%d' % (A + 2, A + 2, A + 2)); E('v_and_b32 v%d, s58, v%d' % (A + 2, A + 2))
        E('v_sqrt_f32 v%d, v%d' % (A + 2, A + 2))
        E('v_cvt_pk_bf16_f32 v%d, v%d, v%d' % (A + 2, A + 2, A + 2)); E('v_and_b32 v%d, s58, v%d' % (A + 2, A + 2))
        E('v_rcp_f32 v%d, v%d' % (rr, A + 2))
        E('v_fma_f32 v%d, -v%d, v%d, 2.0' % (A + 3, A + 2, rr)); E('v_mul_f32 v%d, v%d, v%d' % (rr, rr, A + 3))
    E('s_lshr_b32 s49, s46, 1'); E('s_mul_i32 s49, s49, 28672'); E('s_and_b32 s50, s46, 1'); E('s_lshl_b32 s50, s50, 4')
    E('v_lshrrev_b32 v14, 3, v1'); E('v_add_u32 v14, s50, v14'); E('v_and_b32 v15, 7, v1'); E('v_xor_b32 v14, v14, v15')
    E('v_lshlrev_b32 v14, 4, v14')
    E('v_lshrrev_b32 v9, 1, v15'); E('v_lshl_add_u32 v14, v9, 10, v14'); E('v_and_b32 v9, 1, v15'); E('v_lshl_add_u32 v14, v9, 9, v14')
    E('v_add_u32 v14, s49, v14')
    for rho in range(2):
        for t in range(7):
            x = XR + (rho * 7 + t) * 4
            for o in norm_ops(x, 10 + 2 * rho, 11 + 2 * rho): E(o)
            E.lds('ds_write_b128 v14, v[%d:%d] offset:%d' % (x, x + 3, t * 4096 + rho * 128), 'xw')
    E.stamp(3)
    E('s_mul_i32 s49, s47, 28672')
    for q in range(4):
        E('v_xor_b32 v%d, %d, v3' % (10 + q, 2 * q)); E('v_xor_b32 v%d, v%d, v2' % (10 + q, 10 + q)); E('v_lshlrev_b32 v%d, 4, v%d' % (10 + q, 10 + q))
        E('v_lshl_add_u32 v%d, v2, 9, v%d' % (10 + q, 10 + q)); E('v_add_u32 v%d, s49, v%d' % (10 + q, 10 + q))
    E('s_waitcnt lgkmcnt(0)'); E('s_barrier')
    for s_ in range(28):
        E.lds('ds_read_b128 v[%d:%d], v%d offset:%d' % (X(s_), X(s_) + 3, 10 + (s_ & 3), s_ * 1024), 'xr')
    E('s_waitcnt lgkmcnt(0)'); E('s_barrier')
    for g in range(3, NSLOT):
        dma_stage(E, g)
    E.stamp(4)
    lab1 = 'L_k1_ch1_%s' % E.kname; labj = 'L_k1_join_%s' % E.kname
    E('s_cmp_lg_u32 s48, 0')
    E('s_cbranch_scc1 %s' % lab1)
    vm0, lg0 = list(E.vm), list(E.lg)
    E.flush(2)
    k1_path(E, 0, st_flags, after_qkv, after_h)
    E('s_branch %s' % labj)
    E.label(lab1)
    E.vm, E.lg = list(vm0), list(lg0)
    E.flush(2)
    k1_path(E, 1, st_flags, after_qkv, after_h)
    E.label(labj)
    E('s_waitcnt vmcnt(0)')
    E.stamp(11)
    E.dump_stamps()

def f32bits(x):
    import struct
    return struct.unpack('<I', struct.pack('<f', x))[0]

def k1_path(E, ch, st_flags, after_qkv, after_h):
    steps = [(1, s) for s in range(28)] + [(2, s) for s in range(28)]
    def stage(st): return st[1] >> 2 if st[0] == 1 else 7 + (st[1] >> 1)
    def tiles(st):
        if st[0] == 1: return [0, 1] if ch == 0 else [2]
        return [0, 1, 2] if ch == 0 else [3, 4, 5, 6]
    def wf(buf, ti): return WF + buf * 16 + ti * 4
    def setaddr(st):
        sb = slot_addr(stage(st))
        E('v_add_u32 v9, %d, v%d' % (sb, 7 if st[0] == 1 else 8))
    def read(st, ti, t, buf):
        if st[0] == 1:
            off = (st[1] & 3) * 16 * 192 + t * 64; d2 = 768
        else:
            off = (st[1] & 1) * 3584 + t * 32; d2 = 896
        r = wf(buf, ti)
        E.lds('ds_read_b64_tr_b16 v[%d:%d], v9 offset:%d' % (r, r + 1, off), ('w', st, t))
        E.lds('ds_read_b64_tr_b16 v[%d:%d], v9 offset:%d' % (r + 2, r + 3, off + d2), ('w', st, t))
    E.vwait(('st', 0)); E('s_barrier')
    setaddr(steps[0])
    for ti, t in enumerate(tiles(steps[0])): read(steps[0], ti, t, 0)
    for idx, st in enumerate(steps):
        buf = idx & 1
        nxt = steps[idx + 1] if idx + 1 < len(steps) else None
        tl = tiles(st)
        valu = []
        per = (len(valu) + len(tl) - 1) // len(tl) if valu else 0
        for ti, t in enumerate(tl):
            E.lwait(('w', st, t))
            a = ACC + 16 * ti
            c = ('v[%d:%d]' % (a, a + 15)) if st[1] > 0 else '0'
            w = wf(buf, ti); x = X(st[1])
            if st[0] == 1 and t == 2:
                E('v_mfma_f32_32x32x16_bf16 v[%d:%d], v[%d:%d], v[%d:%d], %s' % (a, a + 15, x, x + 3, w, w + 3, c))
            else:
                E('v_mfma_f32_32x32x16_bf16 v[%d:%d], v[%d:%d], v[%d:%d], %s' % (a, a + 15, w, w + 3, x, x + 3, c))
            if ti == 0 and nxt is not None:
                if stage(nxt) != stage(st):
                    E.vwait(('st', stage(nxt))); E('s_barrier')
                    g = stage(st)
                    if g >= 1 and g + 9 <= 20: dma_stage(E, g + 9)
                    setaddr(nxt)
            if nxt is not None:
                ntl = tiles(nxt)
                if ti < len(ntl): read(nxt, ti, ntl[ti], buf ^ 1)
                if ti == len(tl) - 1:
                    for tj in range(len(tl), len(ntl)): read(nxt, tj, ntl[tj], buf ^ 1)
            for o in valu[ti * per:(ti + 1) * per]: E(o)
        if st == (1, 13): E.stamp(5)
        if st == (2, 13): E.stamp(8)
        if st == (1, 27):
            E.stamp(6)
            epilogue_qkv(E, ch, st_flags)
            E.stamp(7)
            if after_qkv: after_qkv(E)
    E.stamp(9)
    epilogue_h(E, ch, st_flags)
    E.stamp(10)
    if after_h: after_h(E)

def epilogue_qkv(E, ch, fl):
    P = T
    if ch == 0:
        for ti in range(2):
            a = ACC + 16 * ti
            for i in range(8):
                E('v_cvt_pk_bf16_f32 v%d, v%d, v%d' % (P + i, a + 2 * i, a + 2 * i + 1))
            E('v_cndmask_b32 v%d, v%d, 0, s[62:63]' % (P + 6, P + 6))
            E('v_cndmask_b32 v%d, v%d, 0, s[62:63]' % (P + 7, P + 7))
            so = '0' if ti == 0 else 's61'
            E.vmem('buffer_store_dwordx4 v[%d:%d], v240, s[%d:%d], %s offen%s' % (P, P + 3, SWS, SWS + 3, so, fl), 'stq')
            E.vmem('buffer_store_dwordx4 v[%d:%d], v240, s[%d:%d], %s offen offset:256%s' % (P + 4, P + 7, SWS, SWS + 3, so, fl), 'stq')
            P = T + 8 if ti == 0 else T
    else:
        a = ACC
        order = [0, 8, 4, 12]
        E('v_mov_b32 v12, 0x3f803f80')
        for q, b in enumerate(order):
            E('v_cvt_pk_bf16_f32 v%d, v%d, v%d' % (P + 2 * q, a + b, a + b + 1))
            E('v_cvt_pk_bf16_f32 v%d, v%d, v%d' % (P + 2 * q + 1, a + b + 2, a + b + 3))
        for i in range(8):
            E('v_cndmask_b32 v%d, v%d, v12, s[64:65]' % (P + i, P + i))
        E.vmem('buffer_store_dwordx4 v[%d:%d], v241, s[%d:%d], 0 offen%s' % (P, P + 3, SWS, SWS + 3, fl), 'stq')
        E.vmem('buffer_store_dwordx4 v[%d:%d], v241, s[%d:%d], 0 offen offset:512%s' % (P + 4, P + 7, SWS, SWS + 3, fl), 'stq')

def epilogue_h(E, ch, fl):
    tl = [0, 1, 2] if ch == 0 else [3, 4, 5, 6]
    for ti, t in enumerate(tl):
        a = ACC + 16 * ti
        G = T; U = T + 4; H = WF + 4 * ti
        for i in range(4):
            E('v_cvt_pk_bf16_f32 v%d, v%d, v%d' % (G + i, a + 2 * i, a + 2 * i + 1))
            E('v_cvt_pk_bf16_f32 v%d, v%d, v%d' % (U + i, a + 8 + 2 * i, a + 8 + 2 * i + 1))
        for i in range(4):
            E('v_lshlrev_b32 v%d, 16, v%d' % (a + 0, G + i)); E('v_and_b32 v%d, s58, v%d' % (a + 1, G + i))
            E('v_lshlrev_b32 v%d, 16, v%d' % (a + 2, U + i)); E('v_and_b32 v%d, s58, v%d' % (a + 3, U + i))
            E('v_mul_f32 v%d, v%d, v%d' % (a + 0, a + 0, a + 2)); E('v_mul_f32 v%d, v%d, v%d' % (a + 1, a + 1, a + 3))
            E('v_cvt_pk_bf16_f32 v%d, v%d, v%d' % (H + i, a + 0, a + 1))
        E('s_mov_b32 s50, %d' % (t * 1024))
        E.vmem('buffer_store_dwordx4 v[%d:%d], v242, s[%d:%d], s50 offen%s' % (H, H + 3, SWS, SWS + 3, fl), 'sth')
```

```python
from asmlib import *
from k1 import *
import math

KL = 0
VL = 24576
S0 = 32
PB = 104
QF = 140
KF = 144
VF = 160
OA = 176
BI = 184
NEG = 200
SWS2 = 40

def gen_k2_body(E, ld_flags='', st_flags='', use_dma=True, pre_wait=None, after_o=None):
    E.stamp(0)
    E('v_and_b32 v1, 63, v0')
    E('v_lshrrev_b32 v12, 6, v0')
    E('v_readfirstlane_b32 s46, v12')
    decode_rb_j(E)
    E('s_waitcnt lgkmcnt(0)')
    srd(E, SWS2, 22, WS_USED)
    if pre_wait: pre_wait(E)
    E('v_lshlrev_b32 v2, 4, v1')
    E('s_lshl_b32 s49, s44, 17')
    E('s_lshl_b32 s50, s45, 3')
    E('s_mul_i32 s51, s46, 3')
    for n in range(3):
        E('s_add_u32 s52, s50, s51'); E('s_add_i32 s52, s52, %d' % (n - 16)); E('s_max_i32 s52, s52, 0')
        E('s_lshl_b32 s52, s52, 10'); E('s_add_u32 s52, s52, s49'); E('s_add_u32 s52, s52, %d' % K_OFF)
        E('s_mul_i32 s53, s46, 3072');
        if use_dma:
            E('s_add_u32 m0, s53, %d' % (KL + n * 1024))
            E.vmem('buffer_load_dwordx4 v2, s[%d:%d], s52 offen lds%s' % (SWS2, SWS2 + 3, ld_flags), 'kv')
        else:
            E.vmem('buffer_load_dwordx4 v[%d:%d], v2, s[%d:%d], s52 offen%s' % (S0 + 4 * n, S0 + 4 * n + 3, SWS2, SWS2 + 3, ld_flags), 'kv')
    E('s_lshl_b32 s50, s45, 2')
    for n in range(3):
        E('s_add_u32 s52, s51, %d' % n)
        E('s_lshr_b32 s53, s52, 1'); E('s_add_u32 s53, s53, s50'); E('s_add_i32 s53, s53, -8'); E('s_max_i32 s53, s53, 0')
        E('s_lshl_b32 s53, s53, 11'); E('s_and_b32 s54, s52, 1'); E('s_lshl_b32 s54, s54, 10'); E('s_add_u32 s53, s53, s54')
        E('s_add_u32 s53, s53, s49'); E('s_add_u32 s53, s53, %d' % V_OFF)
        if use_dma:
            E('s_lshl_b32 s54, s52, 10'); E('s_add_u32 m0, s54, %d' % VL)
            E.vmem('buffer_load_dwordx4 v2, s[%d:%d], s53 offen lds%s' % (SWS2, SWS2 + 3, ld_flags), 'kv')
        else:
            E.vmem('buffer_load_dwordx4 v[%d:%d], v2, s[%d:%d], s53 offen%s' % (S0 + 12 + 4 * n, S0 + 12 + 4 * n + 3, SWS2, SWS2 + 3, ld_flags), 'kv')
    E('s_lshl_b32 s50, s45, 3'); E('s_add_u32 s50, s50, s46'); E('s_lshl_b32 s52, s50, 10'); E('s_add_u32 s52, s52, s49')
    E.vmem('buffer_load_dwordx4 v[%d:%d], v2, s[%d:%d], s52 offen%s' % (QF, QF + 3, SWS2, SWS2 + 3, ld_flags), 'q')
    E('s_lshl_b32 s52, s50, 4'); E('s_add_u32 s52, s52, s44'); E('s_lshl_b32 s52, s52, 10'); E('s_add_u32 s55, s52, %d' % O_OFF)
    E('v_and_b32 v3, 15, v1')
    E('v_lshrrev_b32 v4, 4, v1')
    E('s_and_b32 s52, s46, 1'); E('s_lshl_b32 s52, s52, 4'); E('s_add_u32 s52, s52, 256')
    E('v_add_u32 v5, s52, v3'); E('v_lshlrev_b32 v6, 2, v4'); E('v_sub_u32 v5, v5, v6')
    E('s_mov_b32 s56, 0xf149f2ca')
    E('v_mov_b32 v7, s56')
    for n in range(4): E('v_mov_b32 v%d, s56' % (NEG + n))
    E('s_movk_i32 s57, 256')
    for bi, tp in enumerate([0, 1, 16, 17]):
        for i in range(4):
            E('v_subrev_u32 v6, %d, v5' % (16 * tp + i))
            E('v_cmp_gt_u32 vcc, s57, v6')
            E('v_cndmask_b32 v%d, v7, 0, vcc' % (BI + 4 * bi + i))
    E('s_lshl_b32 s52, s45, 3'); E('s_sub_i32 s58, 16, s52'); E('s_and_b32 s52, s46, 6'); E('s_sub_i32 s58, s58, s52')
    E('s_lshr_b32 s52, s46, 1'); E('s_lshl_b32 s52, s52, 11')
    E('v_add_u32 v8, s52, v2')
    E.stamp(1)
    if not use_dma:
        E.vwait('kv')
        E('s_mul_i32 s53, s46, 3072'); E('v_add_u32 v9, s53, v2')
        for n in range(3):
            E.lds('ds_write_b128 v9, v[%d:%d] offset:%d' % (S0 + 4 * n, S0 + 4 * n + 3, KL + n * 1024), 'w')
            E.lds('ds_write_b128 v9, v[%d:%d] offset:%d' % (S0 + 12 + 4 * n, S0 + 12 + 4 * n + 3, VL + n * 1024), 'w')
        E('s_waitcnt vmcnt(0) lgkmcnt(0)')
    else:
        E('s_waitcnt vmcnt(0)')
    E('s_barrier')
    E.stamp(2)
    labs = 'L_k2_slow_%s' % E.kname; labj = 'L_k2_join_%s' % E.kname
    E('s_cmp_gt_i32 s58, 0')
    E('s_cbranch_scc1 %s' % labs)
    E.flush(0)
    lg0 = list(E.lg); vm0 = list(E.vm)
    k2_scores(E, False)
    E('s_branch %s' % labj)
    E.label(labs)
    E.lg = list(lg0); E.vm = list(vm0)
    k2_scores(E, True)
    E.label(labj)
    E.flush(8)
    E.stamp(3)
    k2_rest(E, st_flags)
    E('s_waitcnt vmcnt(0)')
    E.stamp(6)
    E.dump_stamps()
    if after_o: after_o(E)

def k2_scores(E, slow):
    bi_of = {0: 0, 1: 1, 16: 2, 17: 3}
    for tp in range(min(3, 18)):
        E.lds('ds_read_b128 v[%d:%d], v8 offset:%d' % (KF + 4 * (tp & 3), KF + 4 * (tp & 3) + 3, KL + tp * 1024), ('k', tp))
    for tp in range(18):
        if tp + 3 < 18:
            n = tp + 3
            E.lds('ds_read_b128 v[%d:%d], v8 offset:%d' % (KF + 4 * (n & 3), KF + 4 * (n & 3) + 3, KL + n * 1024), ('k', n))
        E.lwait(('k', tp))
        k = KF + 4 * (tp & 3); s = S0 + 4 * tp
        if slow:
            l1 = E.newlabel('sl'); l2 = E.newlabel('sl')
            E('s_cmp_gt_i32 s58, %d' % tp)
            E('s_cbranch_scc1 %s' % l1)
            c = 'v[%d:%d]' % (BI + 4 * bi_of[tp], BI + 4 * bi_of[tp] + 3) if tp in bi_of else '0'
            E('v_mfma_f32_16x16x32_bf16 v[%d:%d], v[%d:%d], v[%d:%d], %s' % (s, s + 3, k, k + 3, QF, QF + 3, c))
            E('s_branch %s' % l2)
            E.lines.append(l1 + ':')
            E('v_mfma_f32_16x16x32_bf16 v[%d:%d], v[%d:%d], v[%d:%d], v[%d:%d]' % (s, s + 3, k, k + 3, QF, QF + 3, NEG, NEG + 3))
            E.lines.append(l2 + ':')
        else:
            c = 'v[%d:%d]' % (BI + 4 * bi_of[tp], BI + 4 * bi_of[tp] + 3) if tp in bi_of else '0'
            E('v_mfma_f32_16x16x32_bf16 v[%d:%d], v[%d:%d], v[%d:%d], %s' % (s, s + 3, k, k + 3, QF, QF + 3, c))

def k2_rest(E, st_flags):
    for mt in range(2):
        E.lds('ds_read_b128 v[%d:%d], v8 offset:%d' % (VF + 4 * mt, VF + 4 * mt + 3, VL + mt * 1024), ('v', 0, mt))
    n = 72
    E('v_max3_f32 v12, v%d, v%d, v%d' % (S0, S0 + 1, S0 + 2))
    E('v_max3_f32 v13, v%d, v%d, v%d' % (S0 + 3, S0 + 4, S0 + 5))
    i = 6; tog = 0
    while i + 1 < n:
        r = 12 + tog
        E('v_max3_f32 v%d, v%d, v%d, v%d' % (r, r, S0 + i, S0 + i + 1)); i += 2; tog ^= 1
    E('v_max_f32 v12, v12, v13')
    E('v_mov_b32 v13, v12'); E('v_permlane16_swap_b32 v12, v13'); E('v_max_f32 v12, v12, v13')
    E('v_mov_b32 v13, v12'); E('v_permlane32_swap_b32 v12, v13'); E('v_max_f32 v12, v12, v13')
    c = (28 ** -0.5) * math.log2(math.e)
    E('s_mov_b32 s52, 0x%x' % f32bits(c))
    E('v_mul_f32 v12, s52, v12')
    E.stamp(4)
    for b in range(9):
        for q in range(8):
            r = S0 + 8 * b + q
            E('v_fma_f32 v%d, v%d, s52, -v12' % (r, r))
        for q in range(8):
            r = S0 + 8 * b + q
            E('v_exp_f32 v%d, v%d' % (r, r))
        for q in range(4):
            r = S0 + 8 * b + 2 * q
            E('v_cvt_pk_bf16_f32 v%d, v%d, v%d' % (PB + 4 * b + q, r, r + 1))
        if b + 1 < 9:
            for mt in range(2):
                vf = VF + 8 * ((b + 1) & 1) + 4 * mt
                E.lds('ds_read_b128 v[%d:%d], v8 offset:%d' % (vf, vf + 3, VL + (b + 1) * 2048 + mt * 1024), ('v', b + 1, mt))
        for mt in range(2):
            E.lwait(('v', b, mt))
            vf = VF + 8 * (b & 1) + 4 * mt; o = OA + 4 * mt; p = PB + 4 * b
            cc = 'v[%d:%d]' % (o, o + 3) if b > 0 else '0'
            E('v_mfma_f32_16x16x32_bf16 v[%d:%d], v[%d:%d], v[%d:%d], %s' % (o, o + 3, vf, vf + 3, p, p + 3, cc))
    E.stamp(5)
    E('v_and_b32 v13, 15, v1'); E('v_add_u32 v13, 48, v13'); E('v_lshlrev_b32 v13, 2, v13')
    E.lds('ds_bpermute_b32 v14, v13, v%d' % (OA + 4), 'bp')
    E('v_cmp_le_u32 vcc, 48, v1')
    E.lwait('bp')
    E('v_rcp_f32 v14, v14')
    for i in range(8):
        E('v_mul_f32 v%d, v%d, v14' % (OA + i, OA + i))
    for i in range(4):
        E('v_cndmask_b32 v%d, v%d, 0, vcc' % (OA + 4 + i, OA + 4 + i))
    for q in range(4):
        E('v_cvt_pk_bf16_f32 v%d, v%d, v%d' % (PB + q, OA + 2 * q, OA + 2 * q + 1))
    E.vmem('buffer_store_dwordx4 v[%d:%d], v2, s[%d:%d], s55 offen%s' % (PB, PB + 3, SWS2, SWS2 + 3, st_flags), 'sto')
```

```python
from asmlib import *
from k1 import *
import math

SWD, SWO, SWS3, SX3, SOUT = 24, 28, 32, 36, 40
ACC3 = 64
HB = 128
DEPTH = 3
WF3 = 176
RING = 4096
def gen_k3_body(E, ld_flags='', wait_h=None, wait_o=None):
    E.stamp(0)
    E('v_and_b32 v1, 63, v0')
    E('v_lshrrev_b32 v12, 6, v0')
    E('v_readfirstlane_b32 s46, v12')
    E('s_and_b32 s44, s2, 7'); E('s_lshl_b32 s44, s44, 2'); E('s_lshr_b32 s49, s2, 3'); E('s_and_b32 s49, s49, 3'); E('s_add_u32 s44, s44, s49')
    E('s_lshr_b32 s45, s2, 5')
    E('s_waitcnt lgkmcnt(0)')
    srd(E, SWD, 16, 1792 * 896); srd(E, SWO, 8, 448 * 896); srd(E, SWS3, 22, WS_USED); srd(E, SX3, 4, 2048 * 896); srd(E, SOUT, 18, 2048 * 896)
    E('v_lshrrev_b32 v2, 5, v1')
    E('v_lshlrev_b32 v3, 4, v1')
    E('v_lshrrev_b32 v12, 3, v1'); E('v_mul_u32_u24 v4, 896, v12'); E('v_bfe_u32 v13, v1, 4, 1'); E('v_lshlrev_b32 v13, 2, v13')
    E('v_and_b32 v12, 7, v1'); E('v_xor_b32 v12, v12, v13'); E('v_lshl_add_u32 v4, v12, 4, v4')
    E('s_lshl_b32 s49, s45, 7'); E('v_add_u32 v4, s49, v4')
    E('v_and_b32 v12, 15, v1'); E('v_lshrrev_b32 v13, 2, v12'); E('v_lshl_add_u32 v13, v2, 2, v13'); E('v_lshlrev_b32 v5, 7, v13')
    E('v_bfe_u32 v13, v1, 4, 1'); E('v_lshlrev_b32 v13, 1, v13'); E('v_bfe_u32 v14, v1, 1, 1'); E('v_add_u32 v13, v13, v14')
    E('v_bfe_u32 v14, v1, 3, 1'); E('v_lshlrev_b32 v14, 2, v14'); E('v_xor_b32 v13, v13, v14'); E('v_lshl_add_u32 v5, v13, 4, v5')
    E('v_and_b32 v13, 1, v1'); E('v_lshl_add_u32 v5, v13, 3, v5')
    E('s_mul_i32 s47, s46, %d' % (DEPTH * RING)); E('v_add_u32 v5, s47, v5')
    E('v_xor_b32 v15, 64, v5')
    E('v_bfe_u32 v12, v1, 4, 1'); E('v_lshlrev_b32 v6, 14, v12'); E('v_lshl_add_u32 v6, v2, 8, v6'); E('v_and_b32 v12, 15, v1'); E('v_lshl_add_u32 v6, v12, 4, v6')
    lE = 'L_k3_E_%s' % E.kname; l9 = 'L_k3_D9_%s' % E.kname; lj = 'L_k3_join_%s' % E.kname
    E('s_cmp_ge_u32 s46, 6'); E('s_cbranch_scc1 %s' % lE)
    E('s_cmp_ge_u32 s46, 2'); E('s_cbranch_scc1 %s' % l9)
    vm0, lg0 = list(E.vm), list(E.lg)
    E('s_mul_i32 s48, s46, 10')
    E.flush(0)
    k3_stream(E, 'D', 10, ld_flags, wait_h); E('s_branch %s' % lj)
    E.label(l9); E.vm, E.lg = list(vm0), list(lg0)
    E('s_mul_i32 s48, s46, 9'); E('s_add_u32 s48, s48, 2')
    k3_stream(E, 'D', 9, ld_flags, wait_h); E('s_branch %s' % lj)
    E.label(lE); E.vm, E.lg = list(vm0), list(lg0)
    E('s_sub_u32 s48, s46, 6'); E('s_lshl_b32 s48, s48, 3')
    k3_stream(E, 'E', 8, ld_flags, wait_o)
    E.label(lj)
    E.flush(12)
    E.stamp(7)
    k3_reduce(E)
    E('s_waitcnt vmcnt(0)')
    E.stamp(11)
    E.dump_stamps()

def k3_stream(E, kind, nu, ld_flags, waitfn):
    if kind == 'D':
        E('s_mul_i32 s50, s48, %d' % (32 * 896))
        E('s_mul_i32 s51, s44, 224'); E('s_lshl_b32 s52, s48, 1'); E('s_add_u32 s51, s51, s52'); E('s_lshl_b32 s51, s51, 10'); E('s_add_u32 s51, s51, %d' % H_OFF)
        wsrd = SWD; wstep = 32 * 896
    else:
        E('s_mul_i32 s50, s48, %d' % (28 * 896))
        E('s_lshl_b32 s51, s44, 6'); E('s_add_u32 s51, s51, s48'); E('s_lshl_b32 s51, s51, 10'); E('s_add_u32 s51, s51, %d' % O_OFF)
        wsrd = SWO; wstep = 28 * 896
    def issue_w(u):
        slot = u % DEPTH
        for qd in range(4):
            if True:
                E('s_add_u32 m0, s47, %d' % (slot * RING + qd * 1024))
                E('s_add_u32 s52, s50, %d' % (u * wstep + qd * 8 * 896))
                E.vmem('buffer_load_dwordx4 v4, s[%d:%d], s52 offen lds' % (wsrd, wsrd + 3), ('u', u))
    def issue_b(u):
        slot = u % DEPTH
        for e in range(2):
            for tt in range(2):
                r = HB + slot * 16 + (e * 2 + tt) * 4
                if kind == 'D':
                    E('s_add_u32 s52, s51, %d' % ((tt * 112 + 2 * u + e) * 1024))
                    E.vmem('buffer_load_dwordx4 v[%d:%d], v3, s[%d:%d], s52 offen%s' % (r, r + 3, SWS3, SWS3 + 3, ld_flags), ('u', u))
                else:
                    E('s_add_u32 s52, s51, %d' % ((tt * 32 + u) * 1024 + e * 512))
                    E.vmem('buffer_load_dwordx4 v[%d:%d], v6, s[%d:%d], s52 offen%s' % (r, r + 3, SWS3, SWS3 + 3, ld_flags), ('u', u))
    for u in range(min(DEPTH, nu)): issue_w(u)
    if waitfn: waitfn(E)
    for u in range(min(DEPTH, nu)): issue_b(u)
    E.stamp(1)
    for u in range(nu):
        slot = u % DEPTH
        E.vwait(('u', u))
        if u in (0, 1, 2, 4, 6): E.stamp({0:2,1:3,2:4,4:5,6:6}[u])
        for e in range(2):
            for ct in range(2):
                w = WF3 + e * 8 + ct * 4
                if kind == 'D': o1 = e * 16 * 128; d2 = 8 * 128
                else: o1 = e * 8 * 128; d2 = 16 * 128
                off = slot * RING + o1
                av = 5 if ct == 0 else 15
                E.lds('ds_read_b64_tr_b16 v[%d:%d], v%d offset:%d' % (w, w + 1, av, off), ('w', u, e, ct))
                E.lds('ds_read_b64_tr_b16 v[%d:%d], v%d offset:%d' % (w + 2, w + 3, av, off + d2), ('w', u, e, ct))
        for e in range(2):
            for ct in range(2):
                E.lwait(('w', u, e, ct))
                w = WF3 + e * 8 + ct * 4
                for tt in range(2):
                    a = ACC3 + (ct * 2 + tt) * 16; b = HB + slot * 16 + (e * 2 + tt) * 4
                    c = 'v[%d:%d]' % (a, a + 15) if (u > 0 or e > 0) else '0'
                    E('v_mfma_f32_32x32x16_bf16 v[%d:%d], v[%d:%d], v[%d:%d], %s' % (a, a + 15, w, w + 3, b, b + 3, c))
        if u + DEPTH < nu:
            issue_w(u + DEPTH); issue_b(u + DEPTH)

def k3_reduce(E):
    E('v_and_b32 v7, 31, v0'); E('v_bfe_u32 v8, v0, 5, 2'); E('v_bfe_u32 v9, v0, 7, 1'); E('v_lshrrev_b32 v10, 8, v0')
    E('s_lshl_b32 s49, s44, 6'); E('v_lshl_add_u32 v11, v10, 5, v7'); E('v_add_u32 v11, s49, v11'); E('v_mul_u32_u24 v11, 896, v11')
    E('v_lshlrev_b32 v12, 5, v9'); E('v_lshl_add_u32 v12, v8, 3, v12')
    E('s_lshl_b32 s49, s45, 7'); E('v_lshl_add_u32 v11, v12, 1, v11'); E('v_add_u32 v11, s49, v11')
    E.vmem('buffer_load_dwordx4 v[16:19], v11, s[%d:%d], 0 offen' % (SX3, SX3 + 3), 'x')
    E('s_barrier')
    E.stamp(8)
    E('s_lshl_b32 s49, s46, 14'); E('v_add_u32 v13, s49, v3')
    for t in range(4):
        for a in range(4):
            r = ACC3 + t * 16 + a * 4
            E.lds('ds_write_b128 v13, v[%d:%d] offset:%d' % (r, r + 3, t * 4096 + a * 1024), 'pw')
    E('s_waitcnt lgkmcnt(0)')
    E('s_barrier')
    E.stamp(9)
    E('v_lshlrev_b32 v13, 1, v9'); E('v_add_u32 v13, v13, v10'); E('v_lshl_add_u32 v13, v13, 2, v8'); E('v_lshlrev_b32 v13, 10, v13')
    E('v_lshl_add_u32 v13, v7, 4, v13')
    E('v_add_u32 v14, 0x10000, v13')
    R0 = 64
    for w in range(8):
        for hh in range(2):
            r = R0 + (w * 2 + hh) * 4
            base = 13 if w < 4 else 14
            E.lds('ds_read_b128 v[%d:%d], v%d offset:%d' % (r, r + 3, base, (w & 3) * 16384 + hh * 512), ('pr', w))
    F = 32; S = 40
    E.lwait(('pr', 1))
    for i in range(8): E('v_add_f32 v%d, v%d, v%d' % (F + i, R0 + i, R0 + 8 + i))
    for w in range(2, 6):
        E.lwait(('pr', w))
        for i in range(8): E('v_add_f32 v%d, v%d, v%d' % (F + i, F + i, R0 + w * 8 + i))
    E.lwait(('pr', 7))
    for i in range(8): E('v_add_f32 v%d, v%d, v%d' % (S + i, R0 + 48 + i, R0 + 56 + i))
    E('s_mov_b32 s58, 0xffff0000'); E('s_mov_b32 s59, 0x%x' % f32bits(-math.log2(math.e)))
    for i in range(4):
        E('v_cvt_pk_bf16_f32 v%d, v%d, v%d' % (48 + i, F + 2 * i, F + 2 * i + 1))
        E('v_cvt_pk_bf16_f32 v%d, v%d, v%d' % (52 + i, S + 2 * i, S + 2 * i + 1))
    for i in range(4):
        E('v_lshlrev_b32 v%d, 16, v%d' % (F + 2 * i, 48 + i)); E('v_and_b32 v%d, s58, v%d' % (F + 2 * i + 1, 48 + i))
        E('v_lshlrev_b32 v%d, 16, v%d' % (S + 2 * i, 52 + i)); E('v_and_b32 v%d, s58, v%d' % (S + 2 * i + 1, 52 + i))
    for i in range(8): E('v_mul_f32 v%d, s59, v%d' % (48 + i, F + i))
    for i in range(8): E('v_exp_f32 v%d, v%d' % (48 + i, 48 + i))
    for i in range(8): E('v_add_f32 v%d, 1.0, v%d' % (48 + i, 48 + i))
    for i in range(8): E('v_rcp_f32 v%d, v%d' % (48 + i, 48 + i))
    for i in range(8): E('v_mul_f32 v%d, v%d, v%d' % (F + i, F + i, 48 + i))
    for i in range(4): E('v_cvt_pk_bf16_f32 v%d, v%d, v%d' % (48 + i, F + 2 * i, F + 2 * i + 1))
    for i in range(4):
        E('v_lshlrev_b32 v%d, 16, v%d' % (F + 2 * i, 48 + i)); E('v_and_b32 v%d, s58, v%d' % (F + 2 * i + 1, 48 + i))
    for i in range(8): E('v_mul_f32 v%d, v%d, v%d' % (F + i, F + i, S + i))
    for i in range(4): E('v_cvt_pk_bf16_f32 v%d, v%d, v%d' % (48 + i, F + 2 * i, F + 2 * i + 1))
    E.stamp(10)
    E.vwait('x')
    for i in range(4):
        E('v_lshlrev_b32 v%d, 16, v%d' % (F + 2 * i, 48 + i)); E('v_and_b32 v%d, s58, v%d' % (F + 2 * i + 1, 48 + i))
        E('v_lshlrev_b32 v%d, 16, v%d' % (S + 2 * i, 16 + i)); E('v_and_b32 v%d, s58, v%d' % (S + 2 * i + 1, 16 + i))
    for i in range(8): E('v_add_f32 v%d, v%d, v%d' % (F + i, F + i, S + i))
    for i in range(4): E('v_cvt_pk_bf16_f32 v%d, v%d, v%d' % (48 + i, F + 2 * i, F + 2 * i + 1))
    E.vmem('buffer_store_dwordx4 v[48:51], v11, s[%d:%d], 0 offen' % (SOUT, SOUT + 3), 'out')
```

```python
import sys
sys.path.insert(0, 'gen')
from asmlib import *
from k1 import *
from k2 import *
from k3 import *
import os
STAMP = os.environ.get('STAMP', '').split(',')
HDR = open('recurrent_scan__sliding_block__glu_gated_bilinear__prompt.s.ref').read().split('; Override')[0]
def kernel(name, body, nvgpr, nwg):
    E = Emit(); E.kname = name; E.stamps = (name in STAMP)
    E.raw('.globl %s_kernel' % name); E.raw('.p2align 8'); E.raw('.type %s_kernel,@function' % name); E.raw('%s_kernel:' % name)
    common_prologue(E, nwg)
    body(E)
    E.label('L_exit_%s' % name)
    E('s_endpgm')
    desc = '''.amdhsa_kernel %s_kernel
  .amdhsa_next_free_vgpr %d
  .amdhsa_next_free_sgpr 102
  .amdhsa_accum_offset %d
  .amdhsa_group_segment_fixed_size 0
  .amdhsa_kernarg_size 80
  .amdhsa_user_sgpr_count 2
  .amdhsa_user_sgpr_kernarg_segment_ptr 1
  .amdhsa_system_sgpr_workgroup_id_x 1
.end_amdhsa_kernel
''' % (name, nvgpr, nvgpr)
    return E.text(), desc
def main(out):
    ks = [('k1', gen_k1_body, 256, K1_LDS, 256), ('k2', gen_k2_body, 208, 49152, 256), ('k3', gen_k3_body, 192, 131072, 224)]
    s = HDR
    for n, b, v, lds, nwg in ks:
        s += '; @launch kernel=%s_kernel grid=(%d,1,1) block=(512,1,1) lds=%d\n' % (n, nwg, lds)
    s += '.amdgcn_target "amdgcn-amd-amdhsa--gfx950"\n.text\n'
    descs = ''
    for n, b, v, lds, nwg in ks:
        t, d = kernel(n, b, v, nwg)
        s += t; descs += '.p2align 6\n' + d
    s += '.section .rodata,"a"\n' + descs
    open(out, 'w').write(s)
main(sys.argv[1] if len(sys.argv) > 1 else 'recurrent_scan__sliding_block__glu_gated_bilinear__prompt.s')
```

```python
from asmlib import *

Q_OFF = 0
K_OFF = 2 << 20
V_OFF = 4 << 20
H_OFF = 6 << 20
O_OFF = 14 << 20
WS_USED = 16 << 20

SLOT = 14848
NSLOT = 10
UPOFF = 7168 + 128
XSTAGE = 114688
def slot_addr(g):
    i = g % NSLOT
    return XSTAGE + i * SLOT if i < 3 else (i - 3) * SLOT
K1_LDS = XSTAGE + 3 * SLOT

def common_prologue(E, nwg=256):
    E('s_cmp_ge_u32 s2, %d' % nwg)
    E('s_cbranch_scc1 L_exit_%s' % E.kname)
    E('s_load_dwordx16 s[4:19], s[0:1], 0')
    E('s_load_dwordx4 s[20:23], s[0:1], 64')

def srd(E, d, p, nbytes):
    E('s_mov_b32 s%d, s%d' % (d, p))
    E('s_and_b32 s%d, s%d, 0xffff' % (d + 1, p + 1))
    E('s_mov_b32 s%d, 0x%x' % (d + 2, nbytes))
    E('s_mov_b32 s%d, 0x00020000' % (d + 3))

def decode_rb_j(E):
    E('s_and_b32 s49, s2, 7')
    E('s_lshr_b32 s50, s2, 3')
    E('s_and_b32 s44, s49, 3')
    E('s_lshl_b32 s44, s44, 2')
    E('s_and_b32 s51, s50, 3')
    E('s_add_u32 s44, s44, s51')
    E('s_lshr_b32 s45, s49, 2')
    E('s_lshl_b32 s45, s45, 3')
    E('s_lshr_b32 s51, s50, 2')
    E('s_add_u32 s45, s45, s51')

PUB_KV = None
NONCE_FIN = None
XB = 16
XR = 128
ACC = 128
WF = 192
T = 224
SX, SWQ, SWG, SWU, SWS = 24, 28, 32, 36, 40

def X(s): return XB + 4 * s

def norm_ops(x, nm, rr):
    ops = []
    for i in range(4):
        ops.append('v_dot2_f32_bf16 v%d, v%d, s56, v%d' % (T + 2 * i, x + i, nm))
        ops.append('v_dot2_f32_bf16 v%d, v%d, s57, v%d' % (T + 2 * i + 1, x + i, nm))
    for i in range(4):
        ops.append('v_cvt_pk_bf16_f32 v%d, v%d, v%d' % (T + 8 + i, T + 2 * i, T + 2 * i + 1))
    for i in range(4):
        ops.append('v_lshlrev_b32 v%d, 16, v%d' % (T + 2 * i, T + 8 + i))
        ops.append('v_and_b32 v%d, s58, v%d' % (T + 2 * i + 1, T + 8 + i))
    for i in range(8):
        ops.append('v_mul_f32 v%d, v%d, v%d' % (T + i, T + i, rr))
    for i in range(4):
        ops.append('v_cvt_pk_bf16_f32 v%d, v%d, v%d' % (x + i, T + 2 * i, T + 2 * i + 1))
    return ops

def dma_stage(E, g):
    sb = slot_addr(g)
    if g < 7:
        E('s_mov_b64 exec, s[52:53]')
        for n in range(2):
            E('s_add_u32 m0, s59, %d' % (sb + n * 768))
            E('s_mov_b32 s50, %d' % (g * 64 * 2688 + n * 4 * 2688))
            E.vmem('buffer_load_dwordx4 v5, s[%d:%d], s50 offen lds' % (SWQ, SWQ + 3), ('st', g))
        E('s_mov_b64 exec, -1')
    else:
        tau = g - 7
        E('s_mov_b64 exec, s[54:55]')
        E('s_mov_b32 s50, %d' % (tau * 32 * 3584))
        E('s_add_u32 m0, s60, %d' % sb)
        E.vmem('buffer_load_dwordx4 v6, s[%d:%d], s50 offen lds' % (SWG, SWG + 3), ('st', g))
        E('s_add_u32 m0, s60, %d' % (sb + UPOFF))
        E.vmem('buffer_load_dwordx4 v6, s[%d:%d], s50 offen lds' % (SWU, SWU + 3), ('st', g))
        E('s_mov_b64 exec, -1')

def gen_k1_body(E, st_flags='', after_qkv=None, after_h=None):
    E.stamp(0)
    E('v_and_b32 v1, 63, v0')
    E('v_lshrrev_b32 v12, 6, v0')
    E('v_lshrrev_b32 v2, 5, v1')
    E('v_and_b32 v3, 31, v1')
    E('v_readfirstlane_b32 s46, v12')
    decode_rb_j(E)
    E('s_lshl_b32 s94, s45, 4'); E('s_add_u32 s94, s94, s44')
    E('s_and_b32 s47, s46, 3')
    E('s_lshr_b32 s48, s46, 2')
    E('s_mov_b32 s52, -1'); E('s_mov_b32 s53, 0xffff')
    E('s_mov_b32 s54, -1'); E('s_mov_b32 s55, 0xffffff')
    E('s_mov_b32 s56, 0x00003f80'); E('s_mov_b32 s57, 0x3f800000'); E('s_mov_b32 s58, 0xffff0000')
    E('s_mul_i32 s59, s46, 1536'); E('s_mul_i32 s60, s46, 896')
    E('s_lshl_b32 s49, s45, 7'); E('s_lshl_b32 s50, s46, 4'); E('s_add_u32 s49, s49, s50')
    E('v_lshrrev_b32 v12, 3, v1'); E('v_add_u32 v4, s49, v12'); E('v_mul_u32_u24 v4, 896, v4')
    E('v_and_b32 v13, 7, v1'); E('v_lshl_add_u32 v4, v13, 4, v4')
    E('v_add_u32 v9, %d, v4' % (8 * 896))
    E('s_waitcnt lgkmcnt(0)')
    srd(E, SX, 4, 2048 * 896); srd(E, SWQ, 6, 448 * 2688); srd(E, SWG, 12, 448 * 3584); srd(E, SWU, 14, 448 * 3584)
    srd(E, SWS, 22, WS_USED)
    for rho in range(2):
        for t in range(7):
            r = XR + (rho * 7 + t) * 4
            E.vmem('buffer_load_dwordx4 v[%d:%d], v%d, s[%d:%d], 0 offen offset:%d' % (r, r + 3, 4 if rho == 0 else 9, SX, SX + 3, t * 128), 'x')
    E('v_mul_u32_u24 v12, 43, v1'); E('v_lshrrev_b32 v12, 9, v12')
    E('v_mul_u32_u24 v13, 12, v12'); E('v_sub_u32 v13, v1, v13')
    E('s_lshl_b32 s49, s46, 3'); E('v_add_u32 v12, s49, v12')
    E('v_mul_u32_u24 v5, 2688, v12')
    E('v_lshrrev_b32 v14, 2, v13'); E('v_mul_u32_u24 v14, 896, v14'); E('v_add_u32 v5, v5, v14')
    E('v_and_b32 v14, 3, v13'); E('v_lshl_add_u32 v5, v14, 4, v5')
    E('s_mul_i32 s49, s44, 56'); E('v_add_u32 v5, s49, v5')
    E('v_mul_u32_u24 v12, 37, v1'); E('v_lshrrev_b32 v12, 9, v12')
    E('v_mul_u32_u24 v13, 14, v12'); E('v_sub_u32 v13, v1, v13')
    E('s_lshl_b32 s49, s46, 2'); E('v_add_u32 v12, s49, v12')
    E('v_mul_u32_u24 v6, 3584, v12'); E('v_lshl_add_u32 v6, v13, 4, v6')
    E('s_mul_i32 s49, s44, 224'); E('v_add_u32 v6, s49, v6')
    for g in range(3):
        dma_stage(E, g)
    E('v_and_b32 v12, 15, v1'); E('v_lshrrev_b32 v13, 2, v12'); E('v_lshl_add_u32 v13, v2, 3, v13')
    E('v_and_b32 v12, 3, v12'); E('v_lshlrev_b32 v12, 3, v12')
    E('v_bfe_u32 v14, v1, 4, 1')
    E('v_mul_u32_u24 v7, 192, v13'); E('v_add_u32 v7, v7, v12'); E('v_lshl_add_u32 v7, v14, 5, v7')
    E('v_mul_u32_u24 v8, 224, v13'); E('v_add_u32 v8, v8, v12'); E('v_mul_u32_u24 v14, %d, v14' % UPOFF); E('v_add_u32 v8, v8, v14')
    E('s_lshl_b32 s49, s45, 7'); E('s_lshl_b32 s50, s47, 5'); E('s_add_u32 s49, s49, s50')
    E('v_add_u32 v12, s49, v3')
    E('v_lshrrev_b32 v13, 4, v12'); E('v_lshlrev_b32 v240, 10, v13')
    E('v_and_b32 v13, 15, v12'); E('v_lshl_add_u32 v240, v13, 4, v240')
    E('v_lshl_add_u32 v240, v2, 9, v240')
    E('s_lshl_b32 s50, s44, 17'); E('v_add_u32 v240, s50, v240')
    E('s_lshl_b32 s49, s45, 2'); E('s_add_u32 s49, s49, s47'); E('s_lshl_b32 s51, s49, 11'); E('s_add_u32 s51, s51, s50')
    E('s_add_u32 s51, s51, %d' % V_OFF)
    E('v_lshrrev_b32 v13, 4, v3'); E('v_lshlrev_b32 v241, 10, v13'); E('v_and_b32 v13, 15, v3'); E('v_lshl_add_u32 v241, v13, 4, v241')
    E('v_lshl_add_u32 v241, v2, 8, v241'); E('v_add_u32 v241, s51, v241')
    E('s_mul_i32 s51, s49, 112'); E('s_mul_i32 s50, s44, 7'); E('s_add_u32 s51, s51, s50'); E('s_lshl_b32 s51, s51, 10')
    E('s_add_u32 s51, s51, %d' % H_OFF)
    E('v_lshlrev_b32 v242, 4, v1'); E('v_add_u32 v242, s51, v242')
    E('v_cmp_le_u32 s[62:63], 32, v1')
    E('v_cmp_le_u32 s[64:65], 28, v3')
    E('s_mov_b32 s61, %d' % K_OFF)
    E.stamp(1)
    E.vwait('x')
    E.stamp(2)
    E('s_mov_b32 s49, 0x3f803f80')
    for rho in range(2):
        A = T + rho * 4
        for t in range(7):
            for i in range(4):
                d = XR + (rho * 7 + t) * 4 + i
                first = (t == 0 and i < 2)
                E('v_dot2_f32_bf16 v%d, v%d, s49, %s' % (A + (i & 1), d, '0' if first else 'v%d' % (A + (i & 1))))
                E('v_dot2_f32_bf16 v%d, v%d, v%d, %s' % (A + 2 + (i & 1), d, d, '0' if first else 'v%d' % (A + 2 + (i & 1))))
    for rho in range(2):
        A = T + rho * 4
        E('v_add_f32 v%d, v%d, v%d' % (A, A, A + 1)); E('v_add_f32 v%d, v%d, v%d' % (A + 2, A + 2, A + 3))
    for rho in range(2):
        for q in (0, 2):
            r = T + rho * 4 + q
            E('v_add_f32_dpp v%d, v%d, v%d quad_perm:[1,0,3,2] row_mask:0xf bank_mask:0xf' % (r, r, r))
    for rho in range(2):
        for q in (0, 2):
            r = T + rho * 4 + q
            E('v_add_f32_dpp v%d, v%d, v%d quad_perm:[2,3,0,1] row_mask:0xf bank_mask:0xf' % (r, r, r))
    for rho in range(2):
        for q in (0, 2):
            r = T + rho * 4 + q
            E('v_add_f32_dpp v%d, v%d, v%d row_half_mirror row_mask:0xf bank_mask:0xf' % (r, r, r))
    E('s_mov_b32 s49, 0x%x' % f32bits(1.0 / 448))
    for rho in range(2):
        A = T + rho * 4; nm = 10 + 2 * rho; rr = 11 + 2 * rho
        E('v_mul_f32 v%d, s49, v%d' % (A, A))
        E('v_mul_f32 v%d, s49, v%d' % (A + 2, A + 2))
        E('v_fma_f32 v%d, -v%d, v%d, v%d' % (A + 2, A, A, A + 2))
        E('v_max_f32 v%d, 0, v%d' % (A + 2, A + 2))
        E('v_cvt_pk_bf16_f32 v%d, v%d, v%d' % (A + 1, A, A + 2))
        E('v_lshlrev_b32 v%d, 16, v%d' % (A, A + 1))
        E('v_and_b32 v%d, s58, v%d' % (A + 2, A + 1))
        E('v_xor_b32 v%d, 0x80000000, v%d' % (nm, A))
        E('v_add_f32 v%d, 0x%x, v%d' % (A + 2, f32bits(1e-5), A + 2))
        E('v_cvt_pk_bf16_f32 v%d, v%d, v%d' % (A + 2, A + 2, A + 2)); E('v_and_b32 v%d, s58, v%d' % (A + 2, A + 2))
        E('v_sqrt_f32 v%d, v%d' % (A + 2, A + 2))
        E('v_cvt_pk_bf16_f32 v%d, v%d, v%d' % (A + 2, A + 2, A + 2)); E('v_and_b32 v%d, s58, v%d' % (A + 2, A + 2))
        E('v_rcp_f32 v%d, v%d' % (rr, A + 2))
        E('v_fma_f32 v%d, -v%d, v%d, 2.0' % (A + 3, A + 2, rr)); E('v_mul_f32 v%d, v%d, v%d' % (rr, rr, A + 3))
    E('s_lshr_b32 s49, s46, 1'); E('s_mul_i32 s49, s49, 28672'); E('s_and_b32 s50, s46, 1'); E('s_lshl_b32 s50, s50, 4')
    E('v_lshrrev_b32 v14, 3, v1'); E('v_add_u32 v14, s50, v14'); E('v_and_b32 v15, 7, v1'); E('v_xor_b32 v14, v14, v15')
    E('v_lshlrev_b32 v14, 4, v14')
    E('v_lshrrev_b32 v9, 1, v15'); E('v_lshl_add_u32 v14, v9, 10, v14'); E('v_and_b32 v9, 1, v15'); E('v_lshl_add_u32 v14, v9, 9, v14')
    E('v_add_u32 v14, s49, v14')
    for rho in range(2):
        for t in range(7):
            x = XR + (rho * 7 + t) * 4
            for o in norm_ops(x, 10 + 2 * rho, 11 + 2 * rho): E(o)
            E.lds('ds_write_b128 v14, v[%d:%d] offset:%d' % (x, x + 3, t * 4096 + rho * 128), 'xw')
    E.stamp(3)
    E('s_mul_i32 s49, s47, 28672')
    for q in range(4):
        E('v_xor_b32 v%d, %d, v3' % (10 + q, 2 * q)); E('v_xor_b32 v%d, v%d, v2' % (10 + q, 10 + q)); E('v_lshlrev_b32 v%d, 4, v%d' % (10 + q, 10 + q))
        E('v_lshl_add_u32 v%d, v2, 9, v%d' % (10 + q, 10 + q)); E('v_add_u32 v%d, s49, v%d' % (10 + q, 10 + q))
    E('s_waitcnt lgkmcnt(0)'); E('s_barrier')
    for s_ in range(28):
        E.lds('ds_read_b128 v[%d:%d], v%d offset:%d' % (X(s_), X(s_) + 3, 10 + (s_ & 3), s_ * 1024), 'xr')
    E('s_waitcnt lgkmcnt(0)'); E('s_barrier')
    for g in range(3, 5):
        dma_stage(E, g)
    E.next_dma = 5
    E.stamp(4)
    lab1 = 'L_k1_ch1_%s' % E.kname; labj = 'L_k1_join_%s' % E.kname
    E('s_cmp_lg_u32 s48, 0')
    E('s_cbranch_scc1 %s' % lab1)
    vm0, lg0 = list(E.vm), list(E.lg); nd0 = E.next_dma
    E.flush(2)
    k1_path(E, 0, st_flags, after_qkv, after_h)
    E('s_branch %s' % labj)
    E.label(lab1)
    E.vm, E.lg = list(vm0), list(lg0); E.next_dma = nd0
    E.flush(2)
    k1_path(E, 1, st_flags, after_qkv, after_h)
    E.label(labj)
    if E.stamps:
        E('s_waitcnt vmcnt(0)')
        E.stamp(11)
        E.dump_stamps()

def f32bits(x):
    import struct
    return struct.unpack('<I', struct.pack('<f', x))[0]

def k1_path(E, ch, st_flags, after_qkv, after_h):
    steps = [(1, s) for s in range(28)] + [(2, s) for s in range(28)]
    def stage(st): return st[1] >> 2 if st[0] == 1 else 7 + (st[1] >> 1)
    def tiles(st):
        if st[0] == 1: return [0, 1] if ch == 0 else [2]
        return [0, 1, 2] if ch == 0 else [3, 4, 5, 6]
    def wf(buf, ti): return WF + buf * 16 + ti * 4
    def setaddr(st):
        sb = slot_addr(stage(st))
        E('v_add_u32 v9, %d, v%d' % (sb, 7 if st[0] == 1 else 8))
    def read(st, ti, t, buf):
        if st[0] == 1:
            off = (st[1] & 3) * 16 * 192 + t * 64; d2 = 768
        else:
            off = (st[1] & 1) * 3584 + t * 32; d2 = 896
        r = wf(buf, ti)
        E.lds('ds_read_b64_tr_b16 v[%d:%d], v9 offset:%d' % (r, r + 1, off), ('w', st, t))
        E.lds('ds_read_b64_tr_b16 v[%d:%d], v9 offset:%d' % (r + 2, r + 3, off + d2), ('w', st, t))
    E.vwait(('st', 0)); E('s_barrier')
    setaddr(steps[0])
    for ti, t in enumerate(tiles(steps[0])): read(steps[0], ti, t, 0)
    for idx, st in enumerate(steps):
        buf = idx & 1
        nxt = steps[idx + 1] if idx + 1 < len(steps) else None
        tl = tiles(st)
        valu = []
        per = (len(valu) + len(tl) - 1) // len(tl) if valu else 0
        for ti, t in enumerate(tl):
            E.lwait(('w', st, t))
            a = ACC + 16 * ti
            c = ('v[%d:%d]' % (a, a + 15)) if st[1] > 0 else '0'
            w = wf(buf, ti); x = X(st[1])
            if st[0] == 1 and t == 2:
                E('v_mfma_f32_32x32x16_bf16 v[%d:%d], v[%d:%d], v[%d:%d], %s' % (a, a + 15, x, x + 3, w, w + 3, c))
            else:
                E('v_mfma_f32_32x32x16_bf16 v[%d:%d], v[%d:%d], v[%d:%d], %s' % (a, a + 15, w, w + 3, x, x + 3, c))
            if ti == 0 and nxt is not None:
                if stage(nxt) != stage(st):
                    if stage(nxt) == 9 and PUB_KV: E.vwait('stq')
                    if stage(nxt) == 8 and NONCE_FIN: NONCE_FIN(E)
                    E.vwait(('st', stage(nxt))); E('s_barrier')
                    if stage(nxt) == 9 and PUB_KV: PUB_KV(E)
                    g = stage(st)
                    lim = min(g + 9 if g >= 1 else 9, 20)
                    for _ in range(2):
                        if E.next_dma <= lim: dma_stage(E, E.next_dma); E.next_dma += 1
                    setaddr(nxt)
            if nxt is not None:
                ntl = tiles(nxt)
                if ti < len(ntl): read(nxt, ti, ntl[ti], buf ^ 1)
                if ti == len(tl) - 1:
                    for tj in range(len(tl), len(ntl)): read(nxt, tj, ntl[tj], buf ^ 1)
            for o in valu[ti * per:(ti + 1) * per]: E(o)
        if st == (1, 13): E.stamp(5)
        if st == (2, 13): E.stamp(8)
        if st == (1, 27):
            E.stamp(6)
            epilogue_qkv(E, ch, st_flags)
            E.stamp(7)
            if after_qkv: after_qkv(E)
    E.stamp(9)
    epilogue_h(E, ch, st_flags)
    E.stamp(10)
    if after_h: after_h(E)

def epilogue_qkv(E, ch, fl):
    P = T
    if ch == 0:
        for ti in range(2):
            a = ACC + 16 * ti
            for i in range(8):
                E('v_cvt_pk_bf16_f32 v%d, v%d, v%d' % (P + i, a + 2 * i, a + 2 * i + 1))
            E('v_cndmask_b32 v%d, v%d, 0, s[62:63]' % (P + 6, P + 6))
            E('v_cndmask_b32 v%d, v%d, 0, s[62:63]' % (P + 7, P + 7))
            so = '0' if ti == 0 else 's61'
            E.vmem('buffer_store_dwordx4 v[%d:%d], v240, s[%d:%d], %s offen%s' % (P, P + 3, SWS, SWS + 3, so, fl), 'stq')
            E.vmem('buffer_store_dwordx4 v[%d:%d], v240, s[%d:%d], %s offen offset:256%s' % (P + 4, P + 7, SWS, SWS + 3, so, fl), 'stq')
            P = T + 8 if ti == 0 else T
    else:
        a = ACC
        order = [0, 8, 4, 12]
        E('v_mov_b32 v12, 0x3f803f80')
        for q, b in enumerate(order):
            E('v_cvt_pk_bf16_f32 v%d, v%d, v%d' % (P + 2 * q, a + b, a + b + 1))
            E('v_cvt_pk_bf16_f32 v%d, v%d, v%d' % (P + 2 * q + 1, a + b + 2, a + b + 3))
        for i in range(8):
            E('v_cndmask_b32 v%d, v%d, v12, s[64:65]' % (P + i, P + i))
        E.vmem('buffer_store_dwordx4 v[%d:%d], v241, s[%d:%d], 0 offen%s' % (P, P + 3, SWS, SWS + 3, fl), 'stq')
        E.vmem('buffer_store_dwordx4 v[%d:%d], v241, s[%d:%d], 0 offen offset:512%s' % (P + 4, P + 7, SWS, SWS + 3, fl), 'stq')

def epilogue_h(E, ch, fl):
    tl = [0, 1, 2] if ch == 0 else [3, 4, 5, 6]
    for ti, t in enumerate(tl):
        a = ACC + 16 * ti
        G = T; U = T + 4; H = WF + 4 * ti
        for i in range(4):
            E('v_cvt_pk_bf16_f32 v%d, v%d, v%d' % (G + i, a + 2 * i, a + 2 * i + 1))
            E('v_cvt_pk_bf16_f32 v%d, v%d, v%d' % (U + i, a + 8 + 2 * i, a + 8 + 2 * i + 1))
        for i in range(4):
            E('v_lshlrev_b32 v%d, 16, v%d' % (a + 0, G + i)); E('v_and_b32 v%d, s58, v%d' % (a + 1, G + i))
            E('v_lshlrev_b32 v%d, 16, v%d' % (a + 2, U + i)); E('v_and_b32 v%d, s58, v%d' % (a + 3, U + i))
            E('v_mul_f32 v%d, v%d, v%d' % (a + 0, a + 0, a + 2)); E('v_mul_f32 v%d, v%d, v%d' % (a + 1, a + 1, a + 3))
            E('v_cvt_pk_bf16_f32 v%d, v%d, v%d' % (H + i, a + 0, a + 1))
        E('s_mov_b32 s50, %d' % (t * 1024))
        E.vmem('buffer_store_dwordx4 v[%d:%d], v242, s[%d:%d], s50 offen%s' % (H, H + 3, SWS, SWS + 3, fl), 'sth')
```

```python
from asmlib import *
from k1 import *
import math

KL = 0
VL = 24576
S0 = 32
PB = 104
QF = 140
KF = 144
VF = 160
OA = 176
BI = 184
NEG = 200
SWS2 = 40

def gen_k2_body(E, ld_flags='', st_flags='', use_dma=True, pre_wait=None, after_o=None, pre_lds=None):
    E.stamp(0)
    E('v_and_b32 v1, 63, v0')
    E('v_lshrrev_b32 v12, 6, v0')
    E('v_readfirstlane_b32 s46, v12')
    decode_rb_j(E)
    E('s_waitcnt lgkmcnt(0)')
    srd(E, SWS2, 22, WS_USED)
    if pre_wait: pre_wait(E)
    E('v_lshlrev_b32 v2, 4, v1')
    E('s_lshl_b32 s49, s44, 17')
    E('s_lshl_b32 s50, s45, 3')
    E('s_mul_i32 s51, s46, 3')
    for n in range(3):
        E('s_add_u32 s52, s50, s51'); E('s_add_i32 s52, s52, %d' % (n - 16)); E('s_max_i32 s52, s52, 0')
        E('s_lshl_b32 s52, s52, 10'); E('s_add_u32 s52, s52, s49'); E('s_add_u32 s52, s52, %d' % K_OFF)
        E('s_mul_i32 s53, s46, 3072');
        if use_dma:
            E('s_add_u32 m0, s53, %d' % (KL + n * 1024))
            E.vmem('buffer_load_dwordx4 v2, s[%d:%d], s52 offen lds%s' % (SWS2, SWS2 + 3, ld_flags), 'kv')
        else:
            E.vmem('buffer_load_dwordx4 v[%d:%d], v2, s[%d:%d], s52 offen%s' % (S0 + 4 * n, S0 + 4 * n + 3, SWS2, SWS2 + 3, ld_flags), 'kv')
    E('s_lshl_b32 s50, s45, 2')
    for n in range(3):
        E('s_add_u32 s52, s51, %d' % n)
        E('s_lshr_b32 s53, s52, 1'); E('s_add_u32 s53, s53, s50'); E('s_add_i32 s53, s53, -8'); E('s_max_i32 s53, s53, 0')
        E('s_lshl_b32 s53, s53, 11'); E('s_and_b32 s54, s52, 1'); E('s_lshl_b32 s54, s54, 10'); E('s_add_u32 s53, s53, s54')
        E('s_add_u32 s53, s53, s49'); E('s_add_u32 s53, s53, %d' % V_OFF)
        if use_dma:
            E('s_lshl_b32 s54, s52, 10'); E('s_add_u32 m0, s54, %d' % VL)
            E.vmem('buffer_load_dwordx4 v2, s[%d:%d], s53 offen lds%s' % (SWS2, SWS2 + 3, ld_flags), 'kv')
        else:
            E.vmem('buffer_load_dwordx4 v[%d:%d], v2, s[%d:%d], s53 offen%s' % (S0 + 12 + 4 * n, S0 + 12 + 4 * n + 3, SWS2, SWS2 + 3, ld_flags), 'kv')
    E('s_lshl_b32 s50, s45, 3'); E('s_add_u32 s50, s50, s46'); E('s_lshl_b32 s52, s50, 10'); E('s_add_u32 s52, s52, s49')
    E.vmem('buffer_load_dwordx4 v[%d:%d], v2, s[%d:%d], s52 offen%s' % (QF, QF + 3, SWS2, SWS2 + 3, ld_flags), 'q')
    E('s_lshl_b32 s52, s50, 4'); E('s_add_u32 s52, s52, s44'); E('s_lshl_b32 s52, s52, 10'); E('s_add_u32 s55, s52, %d' % O_OFF)
    E('v_and_b32 v3, 15, v1')
    E('v_lshrrev_b32 v4, 4, v1')
    E('s_and_b32 s52, s46, 1'); E('s_lshl_b32 s52, s52, 4'); E('s_add_u32 s52, s52, 256')
    E('v_add_u32 v5, s52, v3'); E('v_lshlrev_b32 v6, 2, v4'); E('v_sub_u32 v5, v5, v6')
    E('s_mov_b32 s56, 0xf149f2ca')
    E('v_mov_b32 v7, s56')
    for n in range(4): E('v_mov_b32 v%d, s56' % (NEG + n))
    E('s_movk_i32 s57, 256')
    for bi, tp in enumerate([0, 1, 16, 17]):
        for i in range(4):
            E('v_subrev_u32 v6, %d, v5' % (16 * tp + i))
            E('v_cmp_gt_u32 vcc, s57, v6')
            E('v_cndmask_b32 v%d, v7, 0, vcc' % (BI + 4 * bi + i))
    E('s_lshl_b32 s52, s45, 3'); E('s_sub_i32 s58, 16, s52'); E('s_and_b32 s52, s46, 6'); E('s_sub_i32 s58, s58, s52')
    E('s_lshr_b32 s52, s46, 1'); E('s_lshl_b32 s52, s52, 11')
    E('v_add_u32 v8, s52, v2')
    E.stamp(1)
    if not use_dma:
        if pre_lds: pre_lds(E)
        E('s_waitcnt vmcnt(0)')
        E('s_mul_i32 s53, s46, 3072'); E('v_add_u32 v9, s53, v2')
        for n in range(3):
            E.lds('ds_write_b128 v9, v[%d:%d] offset:%d' % (S0 + 4 * n, S0 + 4 * n + 3, KL + n * 1024), 'w')
            E.lds('ds_write_b128 v9, v[%d:%d] offset:%d' % (S0 + 12 + 4 * n, S0 + 12 + 4 * n + 3, VL + n * 1024), 'w')
        E('s_waitcnt vmcnt(0) lgkmcnt(0)')
    else:
        E('s_waitcnt vmcnt(0)')
    E('s_barrier')
    E.stamp(2)
    if hasattr(E, 'fst'): E.fst(6)
    labs = 'L_k2_slow_%s' % E.kname; labj = 'L_k2_join_%s' % E.kname
    E('s_cmp_gt_i32 s58, 0')
    E('s_cbranch_scc1 %s' % labs)
    E.flush(0)
    lg0 = list(E.lg); vm0 = list(E.vm)
    k2_scores(E, False)
    E('s_branch %s' % labj)
    E.label(labs)
    E.lg = list(lg0); E.vm = list(vm0)
    k2_scores(E, True)
    E.label(labj)
    E.flush(8)
    E.stamp(3)
    k2_rest(E, st_flags)
    if E.stamps:
        E('s_waitcnt vmcnt(0)')
        E.stamp(6)
        E.dump_stamps()
    if after_o: after_o(E)

def k2_scores(E, slow):
    bi_of = {0: 0, 1: 1, 16: 2, 17: 3}
    for tp in range(min(3, 18)):
        E.lds('ds_read_b128 v[%d:%d], v8 offset:%d' % (KF + 4 * (tp & 3), KF + 4 * (tp & 3) + 3, KL + tp * 1024), ('k', tp))
    for tp in range(18):
        if tp + 3 < 18:
            n = tp + 3
            E.lds('ds_read_b128 v[%d:%d], v8 offset:%d' % (KF + 4 * (n & 3), KF + 4 * (n & 3) + 3, KL + n * 1024), ('k', n))
        E.lwait(('k', tp))
        k = KF + 4 * (tp & 3); s = S0 + 4 * tp
        if slow:
            l1 = E.newlabel('sl'); l2 = E.newlabel('sl')
            E('s_cmp_gt_i32 s58, %d' % tp)
            E('s_cbranch_scc1 %s' % l1)
            c = 'v[%d:%d]' % (BI + 4 * bi_of[tp], BI + 4 * bi_of[tp] + 3) if tp in bi_of else '0'
            E('v_mfma_f32_16x16x32_bf16 v[%d:%d], v[%d:%d], v[%d:%d], %s' % (s, s + 3, k, k + 3, QF, QF + 3, c))
            E('s_branch %s' % l2)
            E.lines.append(l1 + ':')
            E('v_mfma_f32_16x16x32_bf16 v[%d:%d], v[%d:%d], v[%d:%d], v[%d:%d]' % (s, s + 3, k, k + 3, QF, QF + 3, NEG, NEG + 3))
            E.lines.append(l2 + ':')
        else:
            c = 'v[%d:%d]' % (BI + 4 * bi_of[tp], BI + 4 * bi_of[tp] + 3) if tp in bi_of else '0'
            E('v_mfma_f32_16x16x32_bf16 v[%d:%d], v[%d:%d], v[%d:%d], %s' % (s, s + 3, k, k + 3, QF, QF + 3, c))

def k2_rest(E, st_flags):
    for mt in range(2):
        E.lds('ds_read_b128 v[%d:%d], v8 offset:%d' % (VF + 4 * mt, VF + 4 * mt + 3, VL + mt * 1024), ('v', 0, mt))
    n = 72
    E('v_max3_f32 v12, v%d, v%d, v%d' % (S0, S0 + 1, S0 + 2))
    E('v_max3_f32 v13, v%d, v%d, v%d' % (S0 + 3, S0 + 4, S0 + 5))
    i = 6; tog = 0
    while i + 1 < n:
        r = 12 + tog
        E('v_max3_f32 v%d, v%d, v%d, v%d' % (r, r, S0 + i, S0 + i + 1)); i += 2; tog ^= 1
    E('v_max_f32 v12, v12, v13')
    E('v_mov_b32 v13, v12'); E('v_permlane16_swap_b32 v12, v13'); E('v_max_f32 v12, v12, v13')
    E('v_mov_b32 v13, v12'); E('v_permlane32_swap_b32 v12, v13'); E('v_max_f32 v12, v12, v13')
    c = (28 ** -0.5) * math.log2(math.e)
    E('s_mov_b32 s52, 0x%x' % f32bits(c))
    E('v_mul_f32 v12, s52, v12')
    E.stamp(4)
    for b in range(9):
        for q in range(8):
            r = S0 + 8 * b + q
            E('v_fma_f32 v%d, v%d, s52, -v12' % (r, r))
        for q in range(8):
            r = S0 + 8 * b + q
            E('v_exp_f32 v%d, v%d' % (r, r))
        for q in range(4):
            r = S0 + 8 * b + 2 * q
            E('v_cvt_pk_bf16_f32 v%d, v%d, v%d' % (PB + 4 * b + q, r, r + 1))
        if b + 1 < 9:
            for mt in range(2):
                vf = VF + 8 * ((b + 1) & 1) + 4 * mt
                E.lds('ds_read_b128 v[%d:%d], v8 offset:%d' % (vf, vf + 3, VL + (b + 1) * 2048 + mt * 1024), ('v', b + 1, mt))
        for mt in range(2):
            E.lwait(('v', b, mt))
            vf = VF + 8 * (b & 1) + 4 * mt; o = OA + 4 * mt; p = PB + 4 * b
            cc = 'v[%d:%d]' % (o, o + 3) if b > 0 else '0'
            E('v_mfma_f32_16x16x32_bf16 v[%d:%d], v[%d:%d], v[%d:%d], %s' % (o, o + 3, vf, vf + 3, p, p + 3, cc))
    E.stamp(5)
    E('v_and_b32 v13, 15, v1'); E('v_add_u32 v13, 48, v13'); E('v_lshlrev_b32 v13, 2, v13')
    E.lds('ds_bpermute_b32 v14, v13, v%d' % (OA + 4), 'bp')
    E('v_cmp_le_u32 vcc, 48, v1')
    E.lwait('bp')
    E('v_rcp_f32 v14, v14')
    for i in range(8):
        E('v_mul_f32 v%d, v%d, v14' % (OA + i, OA + i))
    for i in range(4):
        E('v_cndmask_b32 v%d, v%d, 0, vcc' % (OA + 4 + i, OA + 4 + i))
    for q in range(4):
        E('v_cvt_pk_bf16_f32 v%d, v%d, v%d' % (PB + q, OA + 2 * q, OA + 2 * q + 1))
    E.vmem('buffer_store_dwordx4 v[%d:%d], v2, s[%d:%d], s55 offen%s' % (PB, PB + 3, SWS2, SWS2 + 3, st_flags), 'sto')
```

```python
from asmlib import *
from k1 import *
import math

SWD, SWO, SWS3, SX3, SOUT = 24, 28, 32, 36, 40
ACC3 = 64
HB = 128
DEPTH = 3
WF3 = 176
RING = 4096
def gen_k3_body(E, ld_flags='', wait_h=None, wait_o=None):
    E.stamp(0)
    E('v_and_b32 v1, 63, v0')
    E('v_lshrrev_b32 v12, 6, v0')
    E('v_readfirstlane_b32 s46, v12')
    E('s_and_b32 s44, s2, 7'); E('s_lshl_b32 s44, s44, 2'); E('s_lshr_b32 s49, s2, 3'); E('s_and_b32 s49, s49, 3'); E('s_add_u32 s44, s44, s49')
    E('s_lshr_b32 s45, s2, 5')
    E('s_waitcnt lgkmcnt(0)')
    srd(E, SWD, 16, 1792 * 896); srd(E, SWO, 8, 448 * 896); srd(E, SWS3, 22, WS_USED); srd(E, SX3, 4, 2048 * 896); srd(E, SOUT, 18, 2048 * 896)
    E('v_lshrrev_b32 v2, 5, v1')
    E('v_lshlrev_b32 v3, 4, v1')
    E('v_lshrrev_b32 v12, 3, v1'); E('v_mul_u32_u24 v4, 896, v12'); E('v_bfe_u32 v13, v1, 4, 1'); E('v_lshlrev_b32 v13, 2, v13')
    E('v_and_b32 v12, 7, v1'); E('v_xor_b32 v12, v12, v13'); E('v_lshl_add_u32 v4, v12, 4, v4')
    E('s_lshl_b32 s49, s45, 7'); E('v_add_u32 v4, s49, v4')
    E('v_and_b32 v12, 15, v1'); E('v_lshrrev_b32 v13, 2, v12'); E('v_lshl_add_u32 v13, v2, 2, v13'); E('v_lshlrev_b32 v5, 7, v13')
    E('v_bfe_u32 v13, v1, 4, 1'); E('v_lshlrev_b32 v13, 1, v13'); E('v_bfe_u32 v14, v1, 1, 1'); E('v_add_u32 v13, v13, v14')
    E('v_bfe_u32 v14, v1, 3, 1'); E('v_lshlrev_b32 v14, 2, v14'); E('v_xor_b32 v13, v13, v14'); E('v_lshl_add_u32 v5, v13, 4, v5')
    E('v_and_b32 v13, 1, v1'); E('v_lshl_add_u32 v5, v13, 3, v5')
    E('s_mul_i32 s47, s46, %d' % (DEPTH * RING)); E('v_add_u32 v5, s47, v5')
    E('v_xor_b32 v15, 64, v5')
    E('v_bfe_u32 v12, v1, 4, 1'); E('v_lshlrev_b32 v6, 14, v12'); E('v_lshl_add_u32 v6, v2, 8, v6'); E('v_and_b32 v12, 15, v1'); E('v_lshl_add_u32 v6, v12, 4, v6')
    lE = 'L_k3_E_%s' % E.kname; l9 = 'L_k3_D9_%s' % E.kname; lj = 'L_k3_join_%s' % E.kname
    E('s_cmp_ge_u32 s46, 6'); E('s_cbranch_scc1 %s' % lE)
    E('s_cmp_ge_u32 s46, 2'); E('s_cbranch_scc1 %s' % l9)
    vm0, lg0 = list(E.vm), list(E.lg)
    E('s_mul_i32 s48, s46, 10')
    E.flush(0)
    k3_stream(E, 'D', 10, ld_flags, wait_h); E('s_branch %s' % lj)
    E.label(l9); E.vm, E.lg = list(vm0), list(lg0)
    E('s_mul_i32 s48, s46, 9'); E('s_add_u32 s48, s48, 2')
    k3_stream(E, 'D', 9, ld_flags, wait_h); E('s_branch %s' % lj)
    E.label(lE); E.vm, E.lg = list(vm0), list(lg0)
    E('s_sub_u32 s48, s46, 6'); E('s_lshl_b32 s48, s48, 3')
    k3_stream(E, 'E', 8, ld_flags, wait_o)
    E.label(lj)
    E.flush(12)
    E.stamp(7)
    if hasattr(E, 'fst'): E.fst(10)
    k3_reduce(E)
    if E.stamps:
        E('s_waitcnt vmcnt(0)')
        E.stamp(11)
        E.dump_stamps()

def k3_stream(E, kind, nu, ld_flags, waitfn):
    if kind == 'D':
        E('s_mul_i32 s50, s48, %d' % (32 * 896))
        E('s_mul_i32 s51, s44, 224'); E('s_lshl_b32 s52, s48, 1'); E('s_add_u32 s51, s51, s52'); E('s_lshl_b32 s51, s51, 10'); E('s_add_u32 s51, s51, %d' % H_OFF)
        wsrd = SWD; wstep = 32 * 896
    else:
        E('s_mul_i32 s50, s48, %d' % (28 * 896))
        E('s_lshl_b32 s51, s44, 6'); E('s_add_u32 s51, s51, s48'); E('s_lshl_b32 s51, s51, 10'); E('s_add_u32 s51, s51, %d' % O_OFF)
        wsrd = SWO; wstep = 28 * 896
    def issue_w(u):
        slot = u % DEPTH
        for qd in range(4):
            if True:
                E('s_add_u32 m0, s47, %d' % (slot * RING + qd * 1024))
                E('s_add_u32 s52, s50, %d' % (u * wstep + qd * 8 * 896))
                E.vmem('buffer_load_dwordx4 v4, s[%d:%d], s52 offen lds' % (wsrd, wsrd + 3), ('u', u))
    def issue_b(u):
        slot = u % DEPTH
        for e in range(2):
            for tt in range(2):
                r = HB + slot * 16 + (e * 2 + tt) * 4
                if kind == 'D':
                    E('s_add_u32 s52, s51, %d' % ((tt * 112 + 2 * u + e) * 1024))
                    E.vmem('buffer_load_dwordx4 v[%d:%d], v3, s[%d:%d], s52 offen%s' % (r, r + 3, SWS3, SWS3 + 3, ld_flags), ('u', u))
                else:
                    E('s_add_u32 s52, s51, %d' % ((tt * 32 + u) * 1024 + e * 512))
                    E.vmem('buffer_load_dwordx4 v[%d:%d], v6, s[%d:%d], s52 offen%s' % (r, r + 3, SWS3, SWS3 + 3, ld_flags), ('u', u))
    for u in range(min(DEPTH, nu)): issue_w(u)
    if waitfn: waitfn(E)
    for u in range(min(DEPTH, nu)): issue_b(u)
    E.stamp(1)
    for u in range(nu):
        slot = u % DEPTH
        E.vwait(('u', u))
        if u in (0, 1, 2, 4, 6): E.stamp({0:2,1:3,2:4,4:5,6:6}[u])
        if u == 0 and hasattr(E, 'fst'): E.fst(11)
        for e in range(2):
            for ct in range(2):
                w = WF3 + e * 8 + ct * 4
                if kind == 'D': o1 = e * 16 * 128; d2 = 8 * 128
                else: o1 = e * 8 * 128; d2 = 16 * 128
                off = slot * RING + o1
                av = 5 if ct == 0 else 15
                E.lds('ds_read_b64_tr_b16 v[%d:%d], v%d offset:%d' % (w, w + 1, av, off), ('w', u, e, ct))
                E.lds('ds_read_b64_tr_b16 v[%d:%d], v%d offset:%d' % (w + 2, w + 3, av, off + d2), ('w', u, e, ct))
        for e in range(2):
            for ct in range(2):
                E.lwait(('w', u, e, ct))
                w = WF3 + e * 8 + ct * 4
                for tt in range(2):
                    a = ACC3 + (ct * 2 + tt) * 16; b = HB + slot * 16 + (e * 2 + tt) * 4
                    c = 'v[%d:%d]' % (a, a + 15) if (u > 0 or e > 0) else '0'
                    E('v_mfma_f32_32x32x16_bf16 v[%d:%d], v[%d:%d], v[%d:%d], %s' % (a, a + 15, w, w + 3, b, b + 3, c))
        if u + DEPTH < nu:
            issue_w(u + DEPTH); issue_b(u + DEPTH)

def k3_reduce(E):
    E('v_and_b32 v7, 31, v0'); E('v_bfe_u32 v8, v0, 5, 2'); E('v_bfe_u32 v9, v0, 7, 1'); E('v_lshrrev_b32 v10, 8, v0')
    E('s_lshl_b32 s49, s44, 6'); E('v_lshl_add_u32 v11, v10, 5, v7'); E('v_add_u32 v11, s49, v11'); E('v_mul_u32_u24 v11, 896, v11')
    E('v_lshlrev_b32 v12, 5, v9'); E('v_lshl_add_u32 v12, v8, 3, v12')
    E('s_lshl_b32 s49, s45, 7'); E('v_lshl_add_u32 v11, v12, 1, v11'); E('v_add_u32 v11, s49, v11')
    E.vmem('buffer_load_dwordx4 v[16:19], v11, s[%d:%d], 0 offen' % (SX3, SX3 + 3), 'x')
    E('s_barrier')
    E.stamp(8)
    E('s_lshl_b32 s49, s46, 14'); E('v_add_u32 v13, s49, v3')
    for t in range(4):
        for a in range(4):
            r = ACC3 + t * 16 + a * 4
            E.lds('ds_write_b128 v13, v[%d:%d] offset:%d' % (r, r + 3, t * 4096 + a * 1024), 'pw')
    E('s_waitcnt lgkmcnt(0)')
    E('s_barrier')
    E.stamp(9)
    E('v_lshlrev_b32 v13, 1, v9'); E('v_add_u32 v13, v13, v10'); E('v_lshl_add_u32 v13, v13, 2, v8'); E('v_lshlrev_b32 v13, 10, v13')
    E('v_lshl_add_u32 v13, v7, 4, v13')
    E('v_add_u32 v14, 0x10000, v13')
    R0 = 64
    for w in range(8):
        for hh in range(2):
            r = R0 + (w * 2 + hh) * 4
            base = 13 if w < 4 else 14
            E.lds('ds_read_b128 v[%d:%d], v%d offset:%d' % (r, r + 3, base, (w & 3) * 16384 + hh * 512), ('pr', w))
    F = 32; S = 40
    E.lwait(('pr', 1))
    for i in range(8): E('v_add_f32 v%d, v%d, v%d' % (F + i, R0 + i, R0 + 8 + i))
    for w in range(2, 6):
        E.lwait(('pr', w))
        for i in range(8): E('v_add_f32 v%d, v%d, v%d' % (F + i, F + i, R0 + w * 8 + i))
    E.lwait(('pr', 7))
    for i in range(8): E('v_add_f32 v%d, v%d, v%d' % (S + i, R0 + 48 + i, R0 + 56 + i))
    E('s_mov_b32 s58, 0xffff0000'); E('s_mov_b32 s59, 0x%x' % f32bits(-math.log2(math.e)))
    for i in range(4):
        E('v_cvt_pk_bf16_f32 v%d, v%d, v%d' % (48 + i, F + 2 * i, F + 2 * i + 1))
        E('v_cvt_pk_bf16_f32 v%d, v%d, v%d' % (52 + i, S + 2 * i, S + 2 * i + 1))
    for i in range(4):
        E('v_lshlrev_b32 v%d, 16, v%d' % (F + 2 * i, 48 + i)); E('v_and_b32 v%d, s58, v%d' % (F + 2 * i + 1, 48 + i))
        E('v_lshlrev_b32 v%d, 16, v%d' % (S + 2 * i, 52 + i)); E('v_and_b32 v%d, s58, v%d' % (S + 2 * i + 1, 52 + i))
    for i in range(8): E('v_mul_f32 v%d, s59, v%d' % (48 + i, F + i))
    for i in range(8): E('v_exp_f32 v%d, v%d' % (48 + i, 48 + i))
    for i in range(8): E('v_add_f32 v%d, 1.0, v%d' % (48 + i, 48 + i))
    for i in range(8): E('v_rcp_f32 v%d, v%d' % (48 + i, 48 + i))
    for i in range(8): E('v_mul_f32 v%d, v%d, v%d' % (F + i, F + i, 48 + i))
    for i in range(4): E('v_cvt_pk_bf16_f32 v%d, v%d, v%d' % (48 + i, F + 2 * i, F + 2 * i + 1))
    for i in range(4):
        E('v_lshlrev_b32 v%d, 16, v%d' % (F + 2 * i, 48 + i)); E('v_and_b32 v%d, s58, v%d' % (F + 2 * i + 1, 48 + i))
    for i in range(8): E('v_mul_f32 v%d, v%d, v%d' % (F + i, F + i, S + i))
    for i in range(4): E('v_cvt_pk_bf16_f32 v%d, v%d, v%d' % (48 + i, F + 2 * i, F + 2 * i + 1))
    E.stamp(10)
    E.vwait('x')
    for i in range(4):
        E('v_lshlrev_b32 v%d, 16, v%d' % (F + 2 * i, 48 + i)); E('v_and_b32 v%d, s58, v%d' % (F + 2 * i + 1, 48 + i))
        E('v_lshlrev_b32 v%d, 16, v%d' % (S + 2 * i, 16 + i)); E('v_and_b32 v%d, s58, v%d' % (S + 2 * i + 1, 16 + i))
    for i in range(8): E('v_add_f32 v%d, v%d, v%d' % (F + i, F + i, S + i))
    for i in range(4): E('v_cvt_pk_bf16_f32 v%d, v%d, v%d' % (48 + i, F + 2 * i, F + 2 * i + 1))
    E.vmem('buffer_store_dwordx4 v[48:51], v11, s[%d:%d], 0 offen' % (SOUT, SOUT + 3), 'out')
```

```python
import sys, os
sys.path.insert(0, 'gen')
from asmlib import *
import k1, k2, k3
from k1 import *
from k2 import *
from k3 import *
STAMP = os.environ.get('STAMP', '') != ''
HDR = open('recurrent_scan__sliding_block__glu_gated_bilinear__prompt.s.ref').read().split('; Override')[0]
NAME = 'recurrent_scan__sliding_block__glu_gated_bilinear__prompt'
SDBG = 84
SC = ' sc1'
LDF = os.environ.get('LDF', ' sc1')

FLAG_OFF = 24 << 20
SFL = 96
NONCE_LDS = K1_LDS
def get_nonce_issue(E):
    l = E.newlabel('non')
    E('s_cmp_lg_u32 s46, 0'); E('s_cbranch_scc1 %s' % l)
    E('s_memrealtime s[90:91]'); E('s_waitcnt lgkmcnt(0)')
    E('s_or_b32 s90, s90, 1')
    E('v_mov_b32 v248, s90'); E('v_mov_b32 v249, s91'); E('v_mov_b32 v250, 0'); E('v_mov_b32 v251, 0'); E('v_mov_b32 v252, 0')
    E('s_mov_b64 exec, 1')
    E('buffer_atomic_cmpswap_x2 v[248:251], v252, s[%d:%d], 0 offen sc0' % (SDBG, SDBG + 3))
    E('s_mov_b64 exec, -1')
    E.lines.append(l + ':')
def get_nonce_finish(E):
    l = E.newlabel('nonf')
    E('s_cmp_lg_u32 s46, 0'); E('s_cbranch_scc1 %s' % l)
    E('v_readfirstlane_b32 s92, v248'); E('v_readfirstlane_b32 s93, v249')
    E('s_nop 3')
    E('s_cmp_eq_u64 s[92:93], 0'); E('s_cselect_b32 s90, s90, s92'); E('s_cselect_b32 s91, s91, s93')
    E('v_mov_b32 v248, s90'); E('v_mov_b32 v249, s91'); E('v_mov_b32 v252, %d' % NONCE_LDS)
    E('ds_write_b64 v252, v[248:249]')
    E('s_waitcnt lgkmcnt(0)')
    E.lines.append(l + ':')
def load_nonce(E):
    E('v_mov_b32 v252, %d' % NONCE_LDS); E('ds_read_b64 v[248:249], v252'); E('s_waitcnt lgkmcnt(0)')
    E('v_readfirstlane_b32 s90, v248'); E('v_readfirstlane_b32 s91, v249')
    E('s_nop 3')

def publish(E, level, flagoff_s):
    l = E.newlabel('pub')
    E('s_cmp_lg_u32 s46, 0'); E('s_cbranch_scc1 %s' % l)
    E('s_lshl_b32 s92, %s, 3' % flagoff_s); E('s_add_u32 s92, s92, %d' % (FLAG_OFF + (level - 1) * 2048))
    E('v_mov_b32 v248, s90'); E('v_mov_b32 v249, s91'); E('v_mov_b32 v255, s92')
    E('s_mov_b64 exec, 1')
    E('buffer_store_dwordx2 v[248:249], v255, s[%d:%d], 0 offen sc1' % (SFL, SFL + 3))
    E('s_mov_b64 exec, -1')
    E.lines.append(l + ':')

def poll(E, nlanes):
    l = E.newlabel('poll'); d = E.newlabel('polld')
    E('s_mov_b32 s95, 0')
    E('s_mov_b64 exec, %d' % ((1 << nlanes) - 1))
    E.label(l)
    E('buffer_load_dwordx2 v[252:253], v255, s[%d:%d], 0 offen sc1' % (SFL, SFL + 3))
    E('s_waitcnt vmcnt(0)')
    E('v_cmp_ne_u64 vcc, s[90:91], v[252:253]')
    E('s_nop 1')
    E('s_cmp_eq_u64 vcc, 0'); E('s_cbranch_scc1 %s' % d)
    E('s_sleep 8')
    E('s_add_u32 s95, s95, 1'); E('s_cmp_lt_u32 s95, 0x40000'); E('s_cbranch_scc1 %s' % l)
    E.label(d)
    E('s_mov_b64 exec, -1')
    E.vm.append('drained')

def build(out):
    E = Emit(); E.kname = 'f'; E.stamps = False
    def fst(i):
        E.stamps = STAMP; E.stamp(i); E.stamps = False
    E.fst = fst
    E.raw('.globl %s_kernel' % NAME); E.raw('.p2align 8'); E.raw('.type %s_kernel,@function' % NAME); E.raw('%s_kernel:' % NAME)
    common_prologue(E, 256)
    E.stamps = STAMP; E.stamp(0); E.stamps = False
    E('s_waitcnt lgkmcnt(0)')
    srd(E, SDBG, 20, 256); srd(E, SFL, 22, 32 << 20)
    E('v_lshrrev_b32 v12, 6, v0'); E('v_readfirstlane_b32 s46, v12'); E('s_nop 3')
    get_nonce_issue(E)
    def hook_stage(E, g):
        pass
    k1.PUB_KV = lambda E: publish(E, 1, 's94')
    k1.NONCE_FIN = get_nonce_finish
    gen_k1_body(E, st_flags=SC)
    E.stamps = STAMP; E.stamp(1); E.stamps = False
    def pre_wait(E):
        l = E.newlabel('pw')
        E('s_cmp_lg_u32 s46, 0'); E('s_cbranch_scc1 %s' % l)
        E('s_sub_i32 s49, s45, 2'); E('s_cmp_lt_i32 s49, 0'); E('s_cselect_b32 s49, s45, s49'); E('s_lshl_b32 s49, s49, 4'); E('s_add_u32 s49, s49, s44')
        E('s_sub_i32 s50, s45, 1'); E('s_cmp_lt_i32 s50, 0'); E('s_cselect_b32 s50, s45, s50'); E('s_lshl_b32 s50, s50, 4'); E('s_add_u32 s50, s50, s44')
        E('v_mov_b32 v255, s49'); E('v_mov_b32 v254, s50'); E('v_cmp_eq_u32 vcc, 1, v1'); E('v_cndmask_b32 v255, v255, v254, vcc')
        E('v_lshlrev_b32 v255, 3, v255'); E('v_add_u32 v255, %d, v255' % FLAG_OFF)
        poll(E, 2)
        E.label(l)
        E('s_waitcnt vmcnt(0)')
        E.fst(4)
        E('s_barrier')
        publish(E, 2, 's94')
    def pre_lds(E):
        E.fst(5)
    def after_o(E):
        E.fst(7)
        E('s_waitcnt vmcnt(0)'); E('s_barrier')
        publish(E, 3, 's94')
    gen_k2_body(E, ld_flags=LDF, st_flags=SC, use_dma=False, pre_wait=pre_wait, after_o=after_o, pre_lds=pre_lds)
    E.stamps = STAMP; E.stamp(2); E.stamps = False
    E('s_cmp_ge_u32 s2, 224'); E('s_cbranch_scc1 L_exit_f')
    def wait_lvl(level):
        def f(E):
            load_nonce(E)
            E('s_lshr_b32 s49, s44, 1'); E('s_lshl_b32 s49, s49, 7'); E('s_add_u32 s49, s49, %d' % (FLAG_OFF + (level - 1) * 2048))
            E('v_lshlrev_b32 v255, 3, v1'); E('v_add_u32 v255, s49, v255')
            E.fst(8)
            poll(E, 16)
            E.fst(9)
        return f
    gen_k3_body(E, ld_flags=LDF, wait_h=wait_lvl(2), wait_o=wait_lvl(3))
    E.stamps = STAMP; E('s_waitcnt vmcnt(0)'); E.stamp(3); E.dump_stamps(); E.stamps = False
    E.label('L_exit_f')
    E('s_endpgm')
    s = HDR + '; @launch grid=(256,1,1) block=(512,1,1) lds=%d\n' % (K1_LDS + 64)
    s += '.amdgcn_target "amdgcn-amd-amdhsa--gfx950"\n.text\n' + E.text()
    s += '''.section .rodata,"a"
.p2align 6
.amdhsa_kernel %s_kernel
  .amdhsa_next_free_vgpr 256
  .amdhsa_next_free_sgpr 102
  .amdhsa_accum_offset 256
  .amdhsa_group_segment_fixed_size 0
  .amdhsa_kernarg_size 80
  .amdhsa_user_sgpr_count 2
  .amdhsa_user_sgpr_kernarg_segment_ptr 1
  .amdhsa_system_sgpr_workgroup_id_x 1
.end_amdhsa_kernel
''' % NAME
    open(out, 'w').write(s)
    print("nops inserted", E.nops_inserted)
build(sys.argv[1] if len(sys.argv) > 1 else 'cdna_kernels/%s.s' % NAME)
```

```python
import sys, os, math, struct
sys.path.insert(0, 'gen')
from asmlib import *
STAMP = os.environ.get('STAMP', '') != ''
HDR = open('recurrent_scan__sliding_block__glu_gated_bilinear__prompt.s.ref').read().split('; Override')[0]
NAME = 'recurrent_scan__sliding_block__glu_gated_bilinear__prompt'
SC = ' sc1'
CODEPF = os.environ.get('CODEPF', '1') == '1'
def f32bits(x): return struct.unpack('<I', struct.pack('<f', x))[0]

H_OFF = 6 << 20; O_OFF = 14 << 20; FLAG_OFF = 24 << 20; WS_USED = 16 << 20
SLOT = 14848; NSLOT = 10; UPOFF = 7168 + 128; XSTAGE = 114688
def slot_addr(g):
    i = g % NSLOT
    return XSTAGE + i * SLOT if i < 3 else (i - 3) * SLOT
K1_LDS = XSTAGE + 3 * SLOT
NONCE_LDS = K1_LDS
LDS_TOTAL = K1_LDS + 64
KL = XSTAGE + SLOT
VL = 0
RING3 = 24576
SX, SWQ, SWG, SWU, SWS = 24, 28, 32, 36, 40
SDBG, SFL = 84, 96
XB = 16; XR = 128; ACC = 128; WF = 192; T = 224
def X(s): return XB + 4 * s

def srd(E, d, p, nbytes):
    E('s_mov_b32 s%d, s%d' % (d, p)); E('s_and_b32 s%d, s%d, 0xffff' % (d + 1, p + 1))
    E('s_mov_b32 s%d, 0x%x' % (d + 2, nbytes)); E('s_mov_b32 s%d, 0x00020000' % (d + 3))

def nonce_issue(E):
    l = E.newlabel('non')
    E('s_cmp_lg_u32 s46, 0'); E('s_cbranch_scc1 %s' % l)
    E('s_memrealtime s[90:91]'); E('s_waitcnt lgkmcnt(0)')
    E('s_or_b32 s90, s90, 1')
    E('v_mov_b32 v248, s90'); E('v_mov_b32 v249, s91'); E('v_mov_b32 v250, 0'); E('v_mov_b32 v251, 0'); E('v_mov_b32 v252, 0')
    E('s_mov_b64 exec, 1')
    E('buffer_atomic_cmpswap_x2 v[248:251], v252, s[%d:%d], 0 offen sc0' % (SDBG, SDBG + 3))
    E('s_mov_b64 exec, -1')
    E.lines.append(l + ':')
def nonce_finish(E):
    l = E.newlabel('nonf')
    E('s_cmp_lg_u32 s46, 0'); E('s_cbranch_scc1 %s' % l)
    E('v_readfirstlane_b32 s92, v248'); E('v_readfirstlane_b32 s93, v249')
    E('s_nop 3')
    E('s_cmp_eq_u64 s[92:93], 0'); E('s_cselect_b32 s90, s90, s92'); E('s_cselect_b32 s91, s91, s93')
    E('v_mov_b32 v248, s90'); E('v_mov_b32 v249, s91'); E('v_mov_b32 v252, %d' % NONCE_LDS)
    E('ds_write_b64 v252, v[248:249]')
    E('s_waitcnt lgkmcnt(0)')
    E.lines.append(l + ':')
def load_nonce(E):
    E('v_mov_b32 v252, %d' % NONCE_LDS); E('ds_read_b64 v[248:249], v252'); E('s_waitcnt lgkmcnt(0)')
    E('v_readfirstlane_b32 s90, v248'); E('v_readfirstlane_b32 s91, v249')
    E('s_nop 3')
def publish(E, level):
    l = E.newlabel('pub')
    E('s_cmp_lg_u32 s46, 0'); E('s_cbranch_scc1 %s' % l)
    E('s_lshl_b32 s92, s94, 3'); E('s_add_u32 s92, s92, %d' % (FLAG_OFF + (level - 1) * 2048))
    E('v_mov_b32 v248, s90'); E('v_mov_b32 v249, s91'); E('v_mov_b32 v255, s92')
    E('s_mov_b64 exec, 1')
    E('buffer_store_dwordx2 v[248:249], v255, s[%d:%d], 0 offen sc1' % (SFL, SFL + 3))
    E('s_mov_b64 exec, -1')
    E.lines.append(l + ':')
def poll(E, nlanes):
    l = E.newlabel('poll'); d = E.newlabel('polld')
    E('s_mov_b32 s95, 0')
    E('s_mov_b64 exec, %d' % ((1 << nlanes) - 1))
    E.label(l)
    E('buffer_load_dwordx2 v[252:253], v255, s[%d:%d], 0 offen sc1' % (SFL, SFL + 3))
    E('s_waitcnt vmcnt(0)')
    E('v_cmp_ne_u64 vcc, s[90:91], v[252:253]')
    E('s_nop 1')
    E('s_cmp_eq_u64 vcc, 0'); E('s_cbranch_scc1 %s' % d)
    E('s_sleep 8')
    E('s_add_u32 s95, s95, 1'); E('s_cmp_lt_u32 s95, 0x40000'); E('s_cbranch_scc1 %s' % l)
    E.label(d)
    E('s_mov_b64 exec, -1')

def norm_ops(x, nm, rr):
    ops = []
    for i in range(4):
        ops.append('v_dot2_f32_bf16 v%d, v%d, s56, v%d' % (T + 2 * i, x + i, nm))
        ops.append('v_dot2_f32_bf16 v%d, v%d, s57, v%d' % (T + 2 * i + 1, x + i, nm))
    for i in range(4):
        ops.append('v_cvt_pk_bf16_f32 v%d, v%d, v%d' % (T + 8 + i, T + 2 * i, T + 2 * i + 1))
    for i in range(4):
        ops.append('v_lshlrev_b32 v%d, 16, v%d' % (T + 2 * i, T + 8 + i))
        ops.append('v_and_b32 v%d, s58, v%d' % (T + 2 * i + 1, T + 8 + i))
    for i in range(8):
        ops.append('v_mul_f32 v%d, v%d, v%d' % (T + i, T + i, rr))
    for i in range(4):
        ops.append('v_cvt_pk_bf16_f32 v%d, v%d, v%d' % (x + i, T + 2 * i, T + 2 * i + 1))
    return ops

def dma_stage(E, g):
    sb = slot_addr(g)
    if g < 7:
        E('s_mov_b64 exec, s[52:53]')
        for n in range(2):
            E('s_add_u32 m0, s59, %d' % (sb + n * 768))
            E('s_mov_b32 s50, %d' % (g * 64 * 2688 + n * 4 * 2688))
            E.vmem('buffer_load_dwordx4 v5, s[%d:%d], s50 offen lds' % (SWQ, SWQ + 3), ('st', g))
        E('s_mov_b64 exec, -1')
    else:
        tau = g - 7
        E('s_mov_b64 exec, s[54:55]')
        E('s_mov_b32 s50, %d' % (tau * 32 * 3584))
        E('s_add_u32 m0, s60, %d' % sb)
        E.vmem('buffer_load_dwordx4 v6, s[%d:%d], s50 offen lds' % (SWG, SWG + 3), ('st', g))
        E('s_add_u32 m0, s60, %d' % (sb + UPOFF))
        E.vmem('buffer_load_dwordx4 v6, s[%d:%d], s50 offen lds' % (SWU, SWU + 3), ('st', g))
        E('s_mov_b64 exec, -1')

def stage1_prologue(E):
    E('v_and_b32 v1, 63, v0'); E('v_lshrrev_b32 v12, 6, v0'); E('v_lshrrev_b32 v2, 5, v1'); E('v_and_b32 v3, 31, v1')
    E('v_readfirstlane_b32 s46, v12')
    E('s_and_b32 s49, s2, 7'); E('s_lshr_b32 s50, s2, 3'); E('s_and_b32 s44, s49, 3'); E('s_lshl_b32 s44, s44, 2'); E('s_and_b32 s51, s50, 3')
    E('s_add_u32 s44, s44, s51'); E('s_lshr_b32 s45, s49, 2'); E('s_lshl_b32 s45, s45, 3'); E('s_lshr_b32 s51, s50, 2'); E('s_add_u32 s45, s45, s51')
    E('s_lshl_b32 s94, s45, 4'); E('s_add_u32 s94, s94, s44')
    E('s_and_b32 s47, s46, 3'); E('s_lshr_b32 s48, s46, 2')
    E('s_lshl_b32 s49, s45, 7'); E('s_lshl_b32 s50, s46, 4'); E('s_add_u32 s49, s49, s50')
    E('v_lshrrev_b32 v12, 3, v1'); E('v_add_u32 v4, s49, v12'); E('v_mul_u32_u24 v4, 896, v4')
    E('v_and_b32 v13, 7, v1'); E('v_lshl_add_u32 v4, v13, 4, v4')
    E('v_add_u32 v9, %d, v4' % (8 * 896))
    E('s_waitcnt lgkmcnt(0)')
    srd(E, SX, 4, 2048 * 896)
    for rho in range(2):
        for t in range(7):
            r = XR + (rho * 7 + t) * 4
            E.vmem('buffer_load_dwordx4 v[%d:%d], v%d, s[%d:%d], 0 offen offset:%d' % (r, r + 3, 4 if rho == 0 else 9, SX, SX + 3, t * 128), 'x')
    if CODEPF:
        lp = E.newlabel('cpf')
        E('s_lshr_b32 s49, s2, 3'); E('s_lshl_b32 s49, s49, 3'); E('s_add_u32 s49, s49, s46'); E('s_lshl_b32 s49, s49, 10')
        E('s_cmp_ge_u32 s49, L_code_end - L_code_start'); E('s_cbranch_scc1 %s' % lp)
        E('s_getpc_b64 s[50:51]')
        E.lines.append('L_pc_here:')
        E('s_sub_u32 s50, s50, L_pc_here - L_code_start'); E('s_subb_u32 s51, s51, 0')
        E('v_lshlrev_b32 v12, 4, v1'); E('v_add_u32 v12, s49, v12')
        E('global_load_dwordx4 v[%d:%d], v12, s[50:51]' % (T + 12, T + 15))
        E.lines.append(lp + ':')
    srd(E, SWQ, 6, 448 * 2688); srd(E, SWG, 12, 448 * 3584); srd(E, SWU, 14, 448 * 3584); srd(E, SWS, 22, WS_USED)
    srd(E, SDBG, 20, 256); srd(E, SFL, 22, 32 << 20)
    nonce_issue(E)
    E('s_mov_b32 s52, -1'); E('s_mov_b32 s53, 0xffff'); E('s_mov_b32 s54, -1'); E('s_mov_b32 s55, 0xffffff')
    E('s_mov_b32 s56, 0x00003f80'); E('s_mov_b32 s57, 0x3f800000'); E('s_mov_b32 s58, 0xffff0000')
    E('s_mul_i32 s59, s46, 1536'); E('s_mul_i32 s60, s46, 896')
    E('v_mul_u32_u24 v12, 43, v1'); E('v_lshrrev_b32 v12, 9, v12'); E('v_mul_u32_u24 v13, 12, v12'); E('v_sub_u32 v13, v1, v13')
    E('s_lshl_b32 s49, s46, 3'); E('v_add_u32 v12, s49, v12'); E('v_mul_u32_u24 v5, 2688, v12'); E('v_lshl_add_u32 v5, v13, 4, v5')
    E('s_mul_i32 s49, s44, 168'); E('v_add_u32 v5, s49, v5')
    E('v_mul_u32_u24 v12, 37, v1'); E('v_lshrrev_b32 v12, 9, v12'); E('v_mul_u32_u24 v13, 14, v12'); E('v_sub_u32 v13, v1, v13')
    E('s_lshl_b32 s49, s46, 2'); E('v_add_u32 v12, s49, v12'); E('v_mul_u32_u24 v6, 3584, v12'); E('v_lshl_add_u32 v6, v13, 4, v6')
    E('s_mul_i32 s49, s44, 224'); E('v_add_u32 v6, s49, v6')
    E('v_and_b32 v12, 15, v1'); E('v_lshrrev_b32 v13, 2, v12'); E('v_lshl_add_u32 v13, v2, 3, v13')
    E('v_and_b32 v12, 3, v12'); E('v_lshlrev_b32 v12, 3, v12'); E('v_bfe_u32 v14, v1, 4, 1')
    E('v_mul_u32_u24 v7, 192, v13'); E('v_add_u32 v7, v7, v12'); E('v_lshl_add_u32 v7, v14, 5, v7')
    E('v_mul_u32_u24 v8, 224, v13'); E('v_add_u32 v8, v8, v12'); E('v_mul_u32_u24 v14, %d, v14' % UPOFF); E('v_add_u32 v8, v8, v14')
    E('s_lshl_b32 s49, s45, 7'); E('s_lshl_b32 s50, s47, 5'); E('s_add_u32 s49, s49, s50'); E('v_add_u32 v12, s49, v3')
    E('v_lshrrev_b32 v13, 4, v12'); E('v_lshlrev_b32 v240, 10, v13'); E('v_and_b32 v13, 15, v12'); E('v_lshl_add_u32 v240, v13, 4, v240')
    E('v_lshl_add_u32 v240, v2, 9, v240')
    E('s_lshl_b32 s49, s45, 2'); E('s_add_u32 s49, s49, s47'); E('s_mul_i32 s51, s49, 112'); E('s_mul_i32 s50, s44, 7'); E('s_add_u32 s51, s51, s50')
    E('s_lshl_b32 s51, s51, 10'); E('s_add_u32 s51, s51, %d' % H_OFF); E('v_lshlrev_b32 v242, 4, v1'); E('v_add_u32 v242, s51, v242')
    E('v_cmp_le_u32 s[62:63], 32, v1')
    E.fst(1)
    E.vwait('x')
    for g in range(3): dma_stage(E, g)
    E.fst(2)
    E('s_mov_b32 s49, 0x3f803f80')
    for rho in range(2):
        A = T + rho * 4
        for t in range(7):
            for i in range(4):
                d = XR + (rho * 7 + t) * 4 + i
                first = (t == 0 and i < 2)
                E('v_dot2_f32_bf16 v%d, v%d, s49, %s' % (A + (i & 1), d, '0' if first else 'v%d' % (A + (i & 1))))
                E('v_dot2_f32_bf16 v%d, v%d, v%d, %s' % (A + 2 + (i & 1), d, d, '0' if first else 'v%d' % (A + 2 + (i & 1))))
    for rho in range(2):
        A = T + rho * 4
        E('v_add_f32 v%d, v%d, v%d' % (A, A, A + 1)); E('v_add_f32 v%d, v%d, v%d' % (A + 2, A + 2, A + 3))
    for pat in ('quad_perm:[1,0,3,2]', 'quad_perm:[2,3,0,1]', 'row_half_mirror'):
        for rho in range(2):
            for q in (0, 2):
                r = T + rho * 4 + q
                E('v_add_f32_dpp v%d, v%d, v%d %s row_mask:0xf bank_mask:0xf' % (r, r, r, pat))
    E('s_mov_b32 s49, 0x%x' % f32bits(1.0 / 448))
    for rho in range(2):
        A = T + rho * 4; nm = 10 + 2 * rho; rr = 11 + 2 * rho
        E('v_mul_f32 v%d, s49, v%d' % (A, A)); E('v_mul_f32 v%d, s49, v%d' % (A + 2, A + 2))
        E('v_fma_f32 v%d, -v%d, v%d, v%d' % (A + 2, A, A, A + 2)); E('v_max_f32 v%d, 0, v%d' % (A + 2, A + 2))
        E('v_cvt_pk_bf16_f32 v%d, v%d, v%d' % (A + 1, A, A + 2))
        E('v_lshlrev_b32 v%d, 16, v%d' % (A, A + 1)); E('v_and_b32 v%d, s58, v%d' % (A + 2, A + 1))
        E('v_xor_b32 v%d, 0x80000000, v%d' % (nm, A))
        E('v_add_f32 v%d, 0x%x, v%d' % (A + 2, f32bits(1e-5), A + 2))
        E('v_cvt_pk_bf16_f32 v%d, v%d, v%d' % (A + 2, A + 2, A + 2)); E('v_and_b32 v%d, s58, v%d' % (A + 2, A + 2))
        E('v_sqrt_f32 v%d, v%d' % (A + 2, A + 2))
        E('v_cvt_pk_bf16_f32 v%d, v%d, v%d' % (A + 2, A + 2, A + 2)); E('v_and_b32 v%d, s58, v%d' % (A + 2, A + 2))
        E('v_rcp_f32 v%d, v%d' % (rr, A + 2))
        E('v_fma_f32 v%d, -v%d, v%d, 2.0' % (A + 3, A + 2, rr)); E('v_mul_f32 v%d, v%d, v%d' % (rr, rr, A + 3))
    E('s_lshr_b32 s49, s46, 1'); E('s_mul_i32 s49, s49, 28672'); E('s_and_b32 s50, s46, 1'); E('s_lshl_b32 s50, s50, 4')
    E('v_lshrrev_b32 v14, 3, v1'); E('v_add_u32 v14, s50, v14'); E('v_and_b32 v15, 7, v1'); E('v_xor_b32 v14, v14, v15')
    E('v_lshlrev_b32 v14, 4, v14')
    E('v_lshrrev_b32 v9, 1, v15'); E('v_lshl_add_u32 v14, v9, 10, v14'); E('v_and_b32 v9, 1, v15'); E('v_lshl_add_u32 v14, v9, 9, v14')
    E('v_add_u32 v14, s49, v14')
    for rho in range(2):
        for t in range(7):
            x = XR + (rho * 7 + t) * 4
            for o in norm_ops(x, 10 + 2 * rho, 11 + 2 * rho): E(o)
            E.lds('ds_write_b128 v14, v[%d:%d] offset:%d' % (x, x + 3, t * 4096 + rho * 128), 'xw')
    E.fst(3)
    E('s_mul_i32 s49, s47, 28672')
    for q in range(4):
        E('v_xor_b32 v%d, %d, v3' % (10 + q, 2 * q)); E('v_xor_b32 v%d, v%d, v2' % (10 + q, 10 + q)); E('v_lshlrev_b32 v%d, 4, v%d' % (10 + q, 10 + q))
        E('v_lshl_add_u32 v%d, v2, 9, v%d' % (10 + q, 10 + q)); E('v_add_u32 v%d, s49, v%d' % (10 + q, 10 + q))
    E('s_waitcnt lgkmcnt(0)'); E('s_barrier')
    for s_ in range(28):
        E.lds('ds_read_b128 v[%d:%d], v%d offset:%d' % (X(s_), X(s_) + 3, 10 + (s_ & 3), s_ * 1024), 'xr')
    E('s_waitcnt lgkmcnt(0)'); E('s_barrier')
    for g in range(3, 5): dma_stage(E, g)
    E.next_dma = 5
    E.fst(4)

QF = 244
def kv_prefetch_addr(E):
    E('v_lshlrev_b32 v243, 4, v1')
    E('v_bfe_u32 v12, v1, 4, 1'); E('v_lshlrev_b32 v12, 7, v12'); E('v_xor_b32 v241, v243, v12')

def kv_prefetch(E):
    E('s_lshl_b32 s49, s44, 17'); E('s_lshl_b32 s50, s45, 3'); E('s_mul_i32 s51, s46, 3'); E('s_add_u32 s50, s50, s51')
    E('s_mul_i32 s51, s46, 3072')
    for n in range(3):
        E('s_add_i32 s61, s50, %d' % (n - 16)); E('s_max_i32 s61, s61, 0'); E('s_lshl_b32 s61, s61, 10'); E('s_add_u32 s61, s61, s49')
        E('s_add_u32 s92, s61, %d' % (16 << 17)); E('s_add_u32 m0, s51, %d' % (KL + n * 1024))
        E.vmem('buffer_load_dwordx4 v243, s[%d:%d], s92 offen%s lds' % (SWS, SWS + 3, SC), 'kv')
        E('s_add_u32 s92, s61, %d' % (32 << 17)); E('s_add_u32 m0, s51, %d' % (VL + n * 1024))
        E.vmem('buffer_load_dwordx4 v241, s[%d:%d], s92 offen%s lds' % (SWS, SWS + 3, SC), 'kv')
    E('s_lshl_b32 s50, s45, 3'); E('s_add_u32 s50, s50, s46'); E('s_lshl_b32 s61, s50, 10'); E('s_add_u32 s61, s61, s49')
    E.vmem('buffer_load_dwordx4 v[%d:%d], v243, s[%d:%d], s61 offen%s' % (QF, QF + 3, SWS, SWS + 3, SC), 'kv')

def kv_poll(E):
    l = E.newlabel('kvp')
    E('s_cmp_lg_u32 s46, 0'); E('s_cbranch_scc1 %s' % l)
    E('v_add_u32 v12, 1, v1'); E('v_lshrrev_b32 v13, 1, v12')
    E('v_subrev_u32 v13, 1, v13'); E('v_max_i32 v13, 0, v13')
    E('v_and_b32 v14, 1, v1'); E('v_sub_u32 v14, 2, v14')
    E('v_cmp_eq_u32 vcc, 0, v1'); E('v_cndmask_b32 v14, v14, 0, vcc')
    E('v_lshlrev_b32 v14, 4, v14'); E('v_add_u32 v14, s44, v14')
    E('v_mul_u32_u24 v14, 43, v14'); E('v_lshrrev_b32 v14, 7, v14')
    E('v_sub_u32 v13, s45, v13'); E('v_max_i32 v13, 0, v13')
    E('v_lshl_add_u32 v13, v13, 4, v14'); E('v_lshlrev_b32 v255, 3, v13'); E('v_add_u32 v255, %d, v255' % FLAG_OFF)
    poll(E, 7)
    E.lines.append(l + ':')

def stage1_path(E, ch):
    steps = [(1, s) for s in range(28)] + [(2, s) for s in range(28)]
    def stage(st): return st[1] >> 2 if st[0] == 1 else 7 + (st[1] >> 1)
    def tiles(st):
        if st[0] == 1: return [0, 1] if ch == 0 else [2]
        return [0, 1, 2] if ch == 0 else [3, 4, 5, 6]
    def wf(buf, ti): return WF + buf * 16 + ti * 4
    def setaddr(st): E('v_add_u32 v9, %d, v%d' % (slot_addr(stage(st)), 7 if st[0] == 1 else 8))
    def read(st, ti, t, buf):
        if st[0] == 1: off = (st[1] & 3) * 16 * 192 + t * 56; d2 = 768
        else: off = (st[1] & 1) * 3584 + t * 32; d2 = 896
        r = wf(buf, ti)
        E.lds('ds_read_b64_tr_b16 v[%d:%d], v9 offset:%d' % (r, r + 1, off), ('w', st, t))
        E.lds('ds_read_b64_tr_b16 v[%d:%d], v9 offset:%d' % (r + 2, r + 3, off + d2), ('w', st, t))
    E.vwait(('st', 0)); E('s_barrier')
    setaddr(steps[0])
    for ti, t in enumerate(tiles(steps[0])): read(steps[0], ti, t, 0)
    for idx, st in enumerate(steps):
        buf = idx & 1
        nxt = steps[idx + 1] if idx + 1 < len(steps) else None
        tl = tiles(st)
        for ti, t in enumerate(tl):
            E.lwait(('w', st, t))
            a = ACC + 16 * ti
            c = ('v[%d:%d]' % (a, a + 15)) if st[1] > 0 else '0'
            w = wf(buf, ti); x = X(st[1])
            E('v_mfma_f32_32x32x16_bf16 v[%d:%d], v[%d:%d], v[%d:%d], %s' % (a, a + 15, w, w + 3, x, x + 3, c))
            if ti == 0 and nxt is not None and stage(nxt) != stage(st):
                ng = stage(nxt); g = stage(st)
                if ng == 9: E.vwait('stq')
                if ng == 8: nonce_finish(E)
                if ng == 17:
                    kv_poll(E); E.vm.append('maybe_drained')
                E.vwait(('st', ng)); E('s_barrier')
                if ng == 9: publish(E, 1)
                lim = min(g + 9 if g >= 1 else 9, 20)
                for _ in range(2):
                    if E.next_dma <= lim: dma_stage(E, E.next_dma); E.next_dma += 1
                if ng == 16: kv_prefetch_addr(E)
                if ng == 17: kv_prefetch(E)
                setaddr(nxt)
            if nxt is not None:
                ntl = tiles(nxt)
                if ti < len(ntl): read(nxt, ti, ntl[ti], buf ^ 1)
                if ti == len(tl) - 1:
                    for tj in range(len(tl), len(ntl)): read(nxt, tj, ntl[tj], buf ^ 1)
        if st == (1, 27):
            E.fst(5)
            epilogue_qkv(E, ch)
    E.fst(6)
    epilogue_h(E, ch)

def epilogue_qkv(E, ch):
    P = T
    for ti, t in enumerate([0, 1] if ch == 0 else [2]):
        a = ACC + 16 * ti
        E('s_mul_i32 s49, s44, 3'); E('s_add_u32 s49, s49, %d' % t); E('s_lshl_b32 s50, s49, 17')
        E('s_cmp_ge_u32 s49, 32'); E('s_cselect_b32 s51, 0x3f803f80, 0'); E('v_mov_b32 v12, s51')
        for i in range(8):
            E('v_cvt_pk_bf16_f32 v%d, v%d, v%d' % (P + i, a + 2 * i, a + 2 * i + 1))
        E('v_cndmask_b32 v%d, v%d, v12, s[62:63]' % (P + 6, P + 6))
        E('v_cndmask_b32 v%d, v%d, v12, s[62:63]' % (P + 7, P + 7))
        E.vmem('buffer_store_dwordx4 v[%d:%d], v240, s[%d:%d], s50 offen%s' % (P, P + 3, SWS, SWS + 3, SC), 'stq')
        E.vmem('buffer_store_dwordx4 v[%d:%d], v240, s[%d:%d], s50 offen offset:256%s' % (P + 4, P + 7, SWS, SWS + 3, SC), 'stq')
        P = T + 8

def epilogue_h(E, ch):
    tl = [0, 1, 2] if ch == 0 else [3, 4, 5, 6]
    for ti, t in enumerate(tl):
        a = ACC + 16 * ti
        G = T; U = T + 4; H = WF + 4 * ti
        for i in range(4):
            E('v_cvt_pk_bf16_f32 v%d, v%d, v%d' % (G + i, a + 2 * i, a + 2 * i + 1))
            E('v_cvt_pk_bf16_f32 v%d, v%d, v%d' % (U + i, a + 8 + 2 * i, a + 8 + 2 * i + 1))
        for i in range(4):
            b = a + 4 * i
            E('v_lshlrev_b32 v%d, 16, v%d' % (b + 0, G + i)); E('v_and_b32 v%d, s58, v%d' % (b + 1, G + i))
            E('v_lshlrev_b32 v%d, 16, v%d' % (b + 2, U + i)); E('v_and_b32 v%d, s58, v%d' % (b + 3, U + i))
        for i in range(4):
            b = a + 4 * i
            E('v_mul_f32 v%d, v%d, v%d' % (b + 0, b + 0, b + 2)); E('v_mul_f32 v%d, v%d, v%d' % (b + 1, b + 1, b + 3))
        for i in range(4):
            b = a + 4 * i
            E('v_cvt_pk_bf16_f32 v%d, v%d, v%d' % (H + i, b + 0, b + 1))
        E('s_mov_b32 s50, %d' % (t * 1024))
        E.vmem('buffer_store_dwordx4 v[%d:%d], v242, s[%d:%d], s50 offen%s' % (H, H + 3, SWS, SWS + 3, SC), 'sth')

S0 = 32; PB = 104; KF = 144; VF = 160; OA = 176; BI = 184; NEG = 200
def stage2(E):
    E('v_and_b32 v3, 15, v1'); E('v_lshrrev_b32 v4, 4, v1')
    E('s_and_b32 s52, s46, 1'); E('s_lshl_b32 s52, s52, 4'); E('s_add_u32 s52, s52, 256')
    E('v_add_u32 v5, s52, v3'); E('v_lshlrev_b32 v6, 2, v4'); E('v_sub_u32 v5, v5, v6')
    E('s_mov_b32 s56, 0xf149f2ca'); E('v_mov_b32 v7, s56')
    for n in range(4): E('v_mov_b32 v%d, s56' % (NEG + n))
    E('s_movk_i32 s57, 256')
    for bi, tp in enumerate([0, 1, 16, 17]):
        for i in range(4):
            E('v_subrev_u32 v6, %d, v5' % (16 * tp + i)); E('v_cmp_gt_u32 vcc, s57, v6'); E('v_cndmask_b32 v%d, v7, 0, vcc' % (BI + 4 * bi + i))
    E('s_lshl_b32 s52, s45, 3'); E('s_sub_i32 s58, 16, s52'); E('s_and_b32 s52, s46, 6'); E('s_sub_i32 s58, s58, s52')
    E('s_lshr_b32 s52, s46, 1'); E('s_lshl_b32 s52, s52, 11')
    E('v_lshlrev_b32 v2, 4, v1'); E('v_add_u32 v8, s52, v2'); E('v_add_u32 v8, %d, v8' % KL)
    E('v_and_b32 v12, 15, v1'); E('v_lshrrev_b32 v13, 2, v12'); E('v_lshl_add_u32 v13, v4, 2, v13')
    E('v_bfe_u32 v14, v1, 1, 1'); E('v_lshlrev_b32 v15, 3, v14'); E('v_xor_b32 v13, v13, v15')
    E('v_lshlrev_b32 v9, 4, v13'); E('v_lshl_add_u32 v9, v14, 8, v9'); E('v_and_b32 v14, 1, v1'); E('v_lshl_add_u32 v9, v14, 3, v9')
    E('v_add_u32 v9, s52, v9')
    E('s_lshl_b32 s50, s45, 3'); E('s_add_u32 s50, s50, s46'); E('s_lshl_b32 s52, s50, 4'); E('s_add_u32 s52, s52, s44'); E('s_lshl_b32 s52, s52, 10'); E('s_add_u32 s55, s52, %d' % O_OFF)
    E('s_waitcnt vmcnt(0)'); E('s_barrier')
    publish(E, 2)
    E.fst(7)
    stage3_w_prefetch(E)
    labs = 'L_a_slow'; labj = 'L_a_join'
    E('s_cmp_gt_i32 s58, 0'); E('s_cbranch_scc1 %s' % labs)
    E.flush(0)
    lg0 = list(E.lg); vm0 = list(E.vm)
    a_scores(E, False)
    E('s_branch %s' % labj)
    E.label(labs)
    E.lg = list(lg0); E.vm = list(vm0)
    a_scores(E, True)
    E.label(labj)
    E.flush(8)
    a_rest(E)

def a_scores(E, slow):
    bi_of = {0: 0, 1: 1, 16: 2, 17: 3}
    for tp in range(3):
        E.lds('ds_read_b128 v[%d:%d], v8 offset:%d' % (KF + 4 * (tp & 3), KF + 4 * (tp & 3) + 3, tp * 1024), ('k', tp))
    for tp in range(18):
        if tp + 3 < 18:
            n = tp + 3
            E.lds('ds_read_b128 v[%d:%d], v8 offset:%d' % (KF + 4 * (n & 3), KF + 4 * (n & 3) + 3, n * 1024), ('k', n))
        E.lwait(('k', tp))
        k = KF + 4 * (tp & 3); s = S0 + 4 * tp
        c = 'v[%d:%d]' % (BI + 4 * bi_of[tp], BI + 4 * bi_of[tp] + 3) if tp in bi_of else '0'
        if slow:
            l1 = E.newlabel('sl'); l2 = E.newlabel('sl')
            E('s_cmp_gt_i32 s58, %d' % tp); E('s_cbranch_scc1 %s' % l1)
            E('v_mfma_f32_16x16x32_bf16 v[%d:%d], v[%d:%d], v[%d:%d], %s' % (s, s + 3, k, k + 3, QF, QF + 3, c))
            E('s_branch %s' % l2)
            E.lines.append(l1 + ':')
            E('v_mfma_f32_16x16x32_bf16 v[%d:%d], v[%d:%d], v[%d:%d], v[%d:%d]' % (s, s + 3, k, k + 3, QF, QF + 3, NEG, NEG + 3))
            E.lines.append(l2 + ':')
        else:
            E('v_mfma_f32_16x16x32_bf16 v[%d:%d], v[%d:%d], v[%d:%d], %s' % (s, s + 3, k, k + 3, QF, QF + 3, c))

def a_vread(E, b):
    for mt in range(2):
        vf = VF + 8 * (b & 1) + 4 * mt
        for r in range(2):
            E.lds('ds_read_b64_tr_b16 v[%d:%d], v9 offset:%d' % (vf + 2 * r, vf + 2 * r + 1, VL + (2 * b + r) * 1024 + mt * 512), ('v', b, mt))

def a_rest(E):
    a_vread(E, 0)
    n = 72
    E('v_max3_f32 v12, v%d, v%d, v%d' % (S0, S0 + 1, S0 + 2)); E('v_max3_f32 v13, v%d, v%d, v%d' % (S0 + 3, S0 + 4, S0 + 5))
    i = 6; tog = 0
    while i + 1 < n:
        r = 12 + tog
        E('v_max3_f32 v%d, v%d, v%d, v%d' % (r, r, S0 + i, S0 + i + 1)); i += 2; tog ^= 1
    E('v_max_f32 v12, v12, v13')
    E('v_mov_b32 v13, v12'); E('v_permlane16_swap_b32 v12, v13'); E('v_max_f32 v12, v12, v13')
    E('v_mov_b32 v13, v12'); E('v_permlane32_swap_b32 v12, v13'); E('v_max_f32 v12, v12, v13')
    c = (28 ** -0.5) * math.log2(math.e)
    E('s_mov_b32 s52, 0x%x' % f32bits(c)); E('v_mul_f32 v12, s52, v12')
    for b in range(9):
        for q in range(8):
            r = S0 + 8 * b + q
            E('v_fma_f32 v%d, v%d, s52, -v12' % (r, r))
        for q in range(8):
            r = S0 + 8 * b + q
            E('v_exp_f32 v%d, v%d' % (r, r))
        for q in range(4):
            r = S0 + 8 * b + 2 * q
            E('v_cvt_pk_bf16_f32 v%d, v%d, v%d' % (PB + 4 * b + q, r, r + 1))
        if b + 1 < 9: a_vread(E, b + 1)
        for mt in range(2):
            E.lwait(('v', b, mt))
            vf = VF + 8 * (b & 1) + 4 * mt; o = OA + 4 * mt; p = PB + 4 * b
            cc = 'v[%d:%d]' % (o, o + 3) if b > 0 else '0'
            E('v_mfma_f32_16x16x32_bf16 v[%d:%d], v[%d:%d], v[%d:%d], %s' % (o, o + 3, vf, vf + 3, p, p + 3, cc))
    E('v_and_b32 v13, 15, v1'); E('v_add_u32 v13, 48, v13'); E('v_lshlrev_b32 v13, 2, v13')
    E.lds('ds_bpermute_b32 v14, v13, v%d' % (OA + 4), 'bp')
    E('v_cmp_le_u32 vcc, 48, v1')
    E.lwait('bp')
    E('v_rcp_f32 v14, v14')
    for i in range(8): E('v_mul_f32 v%d, v%d, v14' % (OA + i, OA + i))
    for i in range(4): E('v_cndmask_b32 v%d, v%d, 0, vcc' % (OA + 4 + i, OA + 4 + i))
    for q in range(4): E('v_cvt_pk_bf16_f32 v%d, v%d, v%d' % (PB + q, OA + 2 * q, OA + 2 * q + 1))
    E.vmem('buffer_store_dwordx4 v[%d:%d], v2, s[%d:%d], s55 offen%s' % (PB, PB + 3, SWS, SWS + 3, SC), 'sto')

SWD, SWO, SX3, SOUT = 24, 28, 36, 32
ACC3 = 64; HB = 128; DEPTH = 3; WF3 = 176; RING = 4096
def stage3_setup(E):
    E('s_and_b32 s61, s2, 7'); E('s_lshl_b32 s61, s61, 2'); E('s_lshr_b32 s49, s2, 3'); E('s_and_b32 s49, s49, 3'); E('s_add_u32 s61, s61, s49')
    E('s_lshr_b32 s62, s2, 5')
    srd(E, SWD, 16, 1792 * 896); srd(E, SWO, 8, 448 * 896); srd(E, SX3, 4, 2048 * 896); srd(E, SOUT, 18, 2048 * 896)
    E('v_lshrrev_b32 v12, 3, v1'); E('v_mul_u32_u24 v204, 896, v12'); E('v_bfe_u32 v13, v1, 4, 1'); E('v_lshlrev_b32 v13, 2, v13')
    E('v_and_b32 v12, 7, v1'); E('v_xor_b32 v12, v12, v13'); E('v_lshl_add_u32 v204, v12, 4, v204')
    E('s_lshl_b32 s49, s62, 7'); E('v_add_u32 v204, s49, v204')
    E('s_mul_i32 s64, s46, %d' % (DEPTH * RING)); E('s_add_u32 s64, s64, %d' % RING3)
    E('s_mul_i32 s63, s46, 10'); E('s_mul_i32 s49, s46, 9'); E('s_add_u32 s49, s49, 2'); E('s_cmp_ge_u32 s46, 2'); E('s_cselect_b32 s63, s49, s63')
    E('s_sub_u32 s49, s46, 6'); E('s_lshl_b32 s49, s49, 3'); E('s_cmp_ge_u32 s46, 6'); E('s_cselect_b32 s63, s49, s63')
    E('s_mul_i32 s65, s63, %d' % (32 * 896)); E('s_mul_i32 s49, s63, %d' % (28 * 896)); E('s_cselect_b32 s65, s49, s65')

def w_issue(E, kind, u):
    slot = u % DEPTH
    wsrd = SWD if kind == 'D' else SWO; wstep = (32 if kind == 'D' else 28) * 896
    for qd in range(4):
        E('s_add_u32 m0, s64, %d' % (slot * RING + qd * 1024))
        E('s_add_u32 s52, s65, %d' % (u * wstep + qd * 8 * 896))
        E.vmem('buffer_load_dwordx4 v204, s[%d:%d], s52 offen lds' % (wsrd, wsrd + 3), ('u', u))

def stage3_w_prefetch(E):
    l = E.newlabel('s3p'); le = E.newlabel('s3pe')
    stage3_setup(E)
    E('s_cmp_ge_u32 s2, 224'); E('s_cbranch_scc1 %s' % l)
    E('s_cmp_ge_u32 s46, 6'); E('s_cbranch_scc1 %s' % le)
    vm0 = list(E.vm)
    for u in range(DEPTH): w_issue(E, 'D', u)
    E('s_branch %s' % l)
    E.lines.append(le + ':')
    E.vm = vm0
    for u in range(DEPTH): w_issue(E, 'E', u)
    E.lines.append(l + ':')
    E.flush(1)

def stage3(E):
    E('v_lshrrev_b32 v2, 5, v1'); E('v_lshlrev_b32 v3, 4, v1')
    E('v_and_b32 v12, 15, v1'); E('v_lshrrev_b32 v13, 2, v12'); E('v_lshl_add_u32 v13, v2, 2, v13'); E('v_lshlrev_b32 v5, 7, v13')
    E('v_bfe_u32 v13, v1, 4, 1'); E('v_lshlrev_b32 v13, 1, v13'); E('v_bfe_u32 v14, v1, 1, 1'); E('v_add_u32 v13, v13, v14')
    E('v_bfe_u32 v14, v1, 3, 1'); E('v_lshlrev_b32 v14, 2, v14'); E('v_xor_b32 v13, v13, v14'); E('v_lshl_add_u32 v5, v13, 4, v5')
    E('v_and_b32 v13, 1, v1'); E('v_lshl_add_u32 v5, v13, 3, v5')
    E('v_bfe_u32 v12, v1, 4, 1'); E('v_lshlrev_b32 v6, 14, v12'); E('v_lshl_add_u32 v6, v2, 8, v6'); E('v_and_b32 v12, 15, v1'); E('v_lshl_add_u32 v6, v12, 4, v6')
    l = E.newlabel('hp')
    E('s_cmp_ge_u32 s2, 224'); E('s_cbranch_scc1 %s' % l)
    E('s_cmp_lg_u32 s46, 0'); E('s_cbranch_scc1 %s' % l)
    E('s_lshr_b32 s49, s61, 1'); E('s_lshl_b32 s49, s49, 7'); E('s_add_u32 s49, s49, %d' % (FLAG_OFF + 2048))
    E('v_lshlrev_b32 v255, 3, v1'); E('v_add_u32 v255, s49, v255')
    poll(E, 16)
    E.lines.append(l + ':')
    E('s_waitcnt vmcnt(0)'); E('s_barrier')
    publish(E, 3)
    E.fst(8)
    E('s_cmp_ge_u32 s2, 224'); E('s_cbranch_scc1 L_exit')
    E('v_add_u32 v5, s64, v5')
    lE = 'L_s3_E'; l9 = 'L_s3_D9'; lj = 'L_s3_join'
    E('s_cmp_ge_u32 s46, 6'); E('s_cbranch_scc1 %s' % lE)
    E('v_xor_b32 v15, 64, v5')
    E('s_cmp_ge_u32 s46, 2'); E('s_cbranch_scc1 %s' % l9)
    E.vm = [('u', u) for u in range(DEPTH) for _ in range(4)] + ['drained']; lg0 = list(E.lg); vm0 = list(E.vm)
    E.flush(0)
    s3_stream(E, 'D', 10); E('s_branch %s' % lj)
    E.label(l9); E.vm, E.lg = list(vm0), list(lg0)
    s3_stream(E, 'D', 9); E('s_branch %s' % lj)
    E.label(lE); E.vm, E.lg = list(vm0), list(lg0)
    E('v_lshl_add_u32 v5, v2, 9, v5'); E('v_xor_b32 v15, 64, v5')
    load_nonce(E)
    E('s_lshr_b32 s49, s61, 1'); E('s_lshl_b32 s49, s49, 7'); E('s_add_u32 s49, s49, %d' % (FLAG_OFF + 4096))
    E('v_lshlrev_b32 v255, 3, v1'); E('v_add_u32 v255, s49, v255')
    poll(E, 16)
    s3_stream(E, 'E', 8)
    E.label(lj)
    E.flush(12)
    E.fst(10)
    s3_reduce(E)

def s3_stream(E, kind, nu):
    if kind == 'D':
        E('s_mul_i32 s51, s61, 224'); E('s_lshl_b32 s52, s63, 1'); E('s_add_u32 s51, s51, s52'); E('s_lshl_b32 s51, s51, 10'); E('s_add_u32 s51, s51, %d' % H_OFF)
    else:
        E('s_lshl_b32 s51, s61, 6'); E('s_add_u32 s51, s51, s63'); E('s_lshl_b32 s51, s51, 10'); E('s_add_u32 s51, s51, %d' % O_OFF)
    def issue_b(u):
        slot = u % DEPTH
        for e in range(2):
            for tt in range(2):
                r = HB + slot * 16 + (e * 2 + tt) * 4
                if kind == 'D':
                    E('s_add_u32 s52, s51, %d' % ((tt * 112 + 2 * u + e) * 1024))
                    E.vmem('buffer_load_dwordx4 v[%d:%d], v3, s[%d:%d], s52 offen%s' % (r, r + 3, SWS, SWS + 3, SC), ('u', u))
                else:
                    E('s_add_u32 s52, s51, %d' % ((tt * 32 + u) * 1024 + e * 512))
                    E.vmem('buffer_load_dwordx4 v[%d:%d], v6, s[%d:%d], s52 offen%s' % (r, r + 3, SWS, SWS + 3, SC), ('u', u))
    for u in range(min(DEPTH, nu)): issue_b(u)
    for u in range(nu):
        slot = u % DEPTH
        E.vwait(('u', u))
        if u == 0: E.fst(9)
        for e in range(2):
            for ct in range(2):
                w = WF3 + e * 8 + ct * 4
                if kind == 'D': o1 = e * 16 * 128; d2 = 8 * 128
                else: o1 = e * 16 * 128; d2 = 4 * 128
                off = slot * RING + o1
                av = 5 if ct == 0 else 15
                E.lds('ds_read_b64_tr_b16 v[%d:%d], v%d offset:%d' % (w, w + 1, av, off), ('w', u, e, ct))
                E.lds('ds_read_b64_tr_b16 v[%d:%d], v%d offset:%d' % (w + 2, w + 3, av, off + d2), ('w', u, e, ct))
        for e in range(2):
            for ct in range(2):
                E.lwait(('w', u, e, ct))
                w = WF3 + e * 8 + ct * 4
                for tt in range(2):
                    a = ACC3 + (ct * 2 + tt) * 16; b = HB + slot * 16 + (e * 2 + tt) * 4
                    c = 'v[%d:%d]' % (a, a + 15) if (u > 0 or e > 0) else '0'
                    E('v_mfma_f32_32x32x16_bf16 v[%d:%d], v[%d:%d], v[%d:%d], %s' % (a, a + 15, w, w + 3, b, b + 3, c))
        if u + DEPTH < nu:
            w_issue(E, kind, u + DEPTH); issue_b(u + DEPTH)

def s3_reduce(E):
    E('v_and_b32 v7, 31, v0'); E('v_bfe_u32 v8, v0, 5, 2'); E('v_bfe_u32 v9, v0, 7, 1'); E('v_lshrrev_b32 v10, 8, v0')
    E('s_lshl_b32 s49, s61, 6'); E('v_lshl_add_u32 v11, v10, 5, v7'); E('v_add_u32 v11, s49, v11'); E('v_mul_u32_u24 v11, 896, v11')
    E('v_lshlrev_b32 v12, 5, v9'); E('v_lshl_add_u32 v12, v8, 3, v12')
    E('s_lshl_b32 s49, s62, 7'); E('v_lshl_add_u32 v11, v12, 1, v11'); E('v_add_u32 v11, s49, v11')
    E.vmem('buffer_load_dwordx4 v[16:19], v11, s[%d:%d], 0 offen' % (SX3, SX3 + 3), 'x')
    E('s_barrier')
    E('s_lshl_b32 s49, s46, 14'); E('v_add_u32 v13, s49, v3')
    for t in range(4):
        for a in range(4):
            r = ACC3 + t * 16 + a * 4
            E.lds('ds_write_b128 v13, v[%d:%d] offset:%d' % (r, r + 3, t * 4096 + a * 1024), 'pw')
    E('s_waitcnt lgkmcnt(0)'); E('s_barrier')
    E('v_lshlrev_b32 v13, 1, v9'); E('v_add_u32 v13, v13, v10'); E('v_lshl_add_u32 v13, v13, 2, v8'); E('v_lshlrev_b32 v13, 10, v13')
    E('v_lshl_add_u32 v13, v7, 4, v13'); E('v_add_u32 v14, 0x10000, v13')
    R0 = 64
    for w in range(8):
        for hh in range(2):
            r = R0 + (w * 2 + hh) * 4
            E.lds('ds_read_b128 v[%d:%d], v%d offset:%d' % (r, r + 3, 13 if w < 4 else 14, (w & 3) * 16384 + hh * 512), ('pr', w))
    F = 32; S = 40
    E.lwait(('pr', 1))
    for i in range(8): E('v_add_f32 v%d, v%d, v%d' % (F + i, R0 + i, R0 + 8 + i))
    for w in range(2, 6):
        E.lwait(('pr', w))
        for i in range(8): E('v_add_f32 v%d, v%d, v%d' % (F + i, F + i, R0 + w * 8 + i))
    E.lwait(('pr', 7))
    for i in range(8): E('v_add_f32 v%d, v%d, v%d' % (S + i, R0 + 48 + i, R0 + 56 + i))
    E('s_mov_b32 s58, 0xffff0000'); E('s_mov_b32 s59, 0x%x' % f32bits(-math.log2(math.e)))
    for i in range(4):
        E('v_cvt_pk_bf16_f32 v%d, v%d, v%d' % (48 + i, F + 2 * i, F + 2 * i + 1)); E('v_cvt_pk_bf16_f32 v%d, v%d, v%d' % (52 + i, S + 2 * i, S + 2 * i + 1))
    for i in range(4):
        E('v_lshlrev_b32 v%d, 16, v%d' % (F + 2 * i, 48 + i)); E('v_and_b32 v%d, s58, v%d' % (F + 2 * i + 1, 48 + i))
        E('v_lshlrev_b32 v%d, 16, v%d' % (S + 2 * i, 52 + i)); E('v_and_b32 v%d, s58, v%d' % (S + 2 * i + 1, 52 + i))
    for i in range(8): E('v_mul_f32 v%d, s59, v%d' % (48 + i, F + i))
    for i in range(8): E('v_exp_f32 v%d, v%d' % (48 + i, 48 + i))
    for i in range(8): E('v_add_f32 v%d, 1.0, v%d' % (48 + i, 48 + i))
    for i in range(8): E('v_rcp_f32 v%d, v%d' % (48 + i, 48 + i))
    for i in range(8): E('v_mul_f32 v%d, v%d, v%d' % (F + i, F + i, 48 + i))
    for i in range(4): E('v_cvt_pk_bf16_f32 v%d, v%d, v%d' % (48 + i, F + 2 * i, F + 2 * i + 1))
    for i in range(4):
        E('v_lshlrev_b32 v%d, 16, v%d' % (F + 2 * i, 48 + i)); E('v_and_b32 v%d, s58, v%d' % (F + 2 * i + 1, 48 + i))
    for i in range(8): E('v_mul_f32 v%d, v%d, v%d' % (F + i, F + i, S + i))
    for i in range(4): E('v_cvt_pk_bf16_f32 v%d, v%d, v%d' % (48 + i, F + 2 * i, F + 2 * i + 1))
    E.vwait('x')
    for i in range(4):
        E('v_lshlrev_b32 v%d, 16, v%d' % (F + 2 * i, 48 + i)); E('v_and_b32 v%d, s58, v%d' % (F + 2 * i + 1, 48 + i))
        E('v_lshlrev_b32 v%d, 16, v%d' % (S + 2 * i, 16 + i)); E('v_and_b32 v%d, s58, v%d' % (S + 2 * i + 1, 16 + i))
    for i in range(8): E('v_add_f32 v%d, v%d, v%d' % (F + i, F + i, S + i))
    for i in range(4): E('v_cvt_pk_bf16_f32 v%d, v%d, v%d' % (48 + i, F + 2 * i, F + 2 * i + 1))
    E.vmem('buffer_store_dwordx4 v[48:51], v11, s[%d:%d], 0 offen' % (SOUT, SOUT + 3), 'out')

def build(out):
    E = Emit(); E.kname = 'f'; E.stamps = False
    def fst(i):
        if STAMP:
            E('s_memtime s[%d:%d]' % (66 + 2 * i, 67 + 2 * i))
            E('s_waitcnt lgkmcnt(0)')
    E.fst = fst
    E.raw('.globl %s_kernel' % NAME); E.raw('.p2align 8'); E.raw('.type %s_kernel,@function' % NAME); E.raw('%s_kernel:' % NAME)
    E.lines.append('L_code_start:')
    E('s_cmp_ge_u32 s2, 256'); E('s_cbranch_scc1 L_exit')
    E('s_load_dwordx16 s[4:19], s[0:1], 0'); E('s_load_dwordx4 s[20:23], s[0:1], 64')
    E.fst(0)
    stage1_prologue(E)
    E('s_cmp_lg_u32 s48, 0'); E('s_cbranch_scc1 L_s1_ch1')
    vm0, lg0, nd0 = list(E.vm), list(E.lg), E.next_dma
    E.flush(2)
    stage1_path(E, 0); vmA = list(E.vm)
    E('s_branch L_s1_join')
    E.label('L_s1_ch1'); E.vm, E.lg, E.next_dma = list(vm0), list(lg0), nd0
    E.flush(2)
    stage1_path(E, 1)
    E.label('L_s1_join')
    stage2(E)
    stage3(E)
    if STAMP:
        E('s_waitcnt vmcnt(0)')
        E.stamps = True
        E('s_memtime s[88:89]'); E('s_waitcnt lgkmcnt(0)')
        E.dump_stamps()
    E.label('L_exit')
    E('s_endpgm')
    E.lines.append('.p2align 10'); E.lines.append('L_code_end:')
    s = HDR + '; @launch grid=(256,1,1) block=(512,1,1) lds=%d\n' % LDS_TOTAL
    s += '.amdgcn_target "amdgcn-amd-amdhsa--gfx950"\n.text\n' + E.text()
    s += '''.section .rodata,"a"
.p2align 6
.amdhsa_kernel %s_kernel
  .amdhsa_next_free_vgpr 256
  .amdhsa_next_free_sgpr 102
  .amdhsa_accum_offset 256
  .amdhsa_group_segment_fixed_size 0
  .amdhsa_kernarg_size 80
  .amdhsa_user_sgpr_count 2
  .amdhsa_user_sgpr_kernarg_segment_ptr 1
  .amdhsa_system_sgpr_workgroup_id_x 1
.end_amdhsa_kernel
''' % NAME
    open(out, 'w').write(s)
    print("nops inserted", E.nops_inserted, "bytes", len(s))
if __name__ == '__main__':
    build(sys.argv[1] if len(sys.argv) > 1 else 'cdna_kernels/%s.s' % NAME)
```

```python
import sys, os, math, struct
sys.path.insert(0, 'gen')
from asmlib import *
STAMP = os.environ.get('STAMP', '') != ''
HDR = open('recurrent_scan__sliding_block__glu_gated_bilinear__prompt.s.ref').read().split('; Override')[0]
NAME = 'recurrent_scan__sliding_block__glu_gated_bilinear__prompt'
SC = ' sc1'
WARM = os.environ.get('WARM', '1') == '1'
CODEPF = os.environ.get('CODEPF', '0') == '1'
def f32bits(x): return struct.unpack('<I', struct.pack('<f', x))[0]

H_OFF = 6 << 20; O_OFF = 14 << 20; FLAG_OFF = 24 << 20; WS_USED = 16 << 20
SLOT = 14848; NSLOT = 10; UPOFF = 7168 + 128; XSTAGE = 114688
def slot_addr(g):
    i = g % NSLOT
    return XSTAGE + i * SLOT if i < 3 else (i - 3) * SLOT
K1_LDS = XSTAGE + 3 * SLOT
NONCE_LDS = K1_LDS
LDS_TOTAL = K1_LDS + 64
KL = XSTAGE + SLOT
VL = 0
RING3 = 24576
SX, SWQ, SWG, SWU, SWS = 24, 28, 32, 36, 40
SDBG, SFL = 84, 96
XB = 16; XR = 128; ACC = 128; WF = 192; T = 224
def X(s): return XB + 4 * s

def srd(E, d, p, nbytes):
    E('s_mov_b32 s%d, s%d' % (d, p)); E('s_and_b32 s%d, s%d, 0xffff' % (d + 1, p + 1))
    E('s_mov_b32 s%d, 0x%x' % (d + 2, nbytes)); E('s_mov_b32 s%d, 0x00020000' % (d + 3))

def nonce_issue(E):
    l = E.newlabel('non')
    E('s_cmp_lg_u32 s46, 0'); E('s_cbranch_scc1 %s' % l)
    E('s_memrealtime s[90:91]'); E('s_waitcnt lgkmcnt(0)')
    E('s_or_b32 s90, s90, 1')
    E('v_mov_b32 v248, s90'); E('v_mov_b32 v249, s91'); E('v_mov_b32 v250, 0'); E('v_mov_b32 v251, 0'); E('v_mov_b32 v252, 0')
    E('s_mov_b64 exec, 1')
    E('buffer_atomic_cmpswap_x2 v[248:251], v252, s[%d:%d], 0 offen sc0' % (SDBG, SDBG + 3))
    E('s_mov_b64 exec, -1')
    E.lines.append(l + ':')
def nonce_finish(E):
    l = E.newlabel('nonf')
    E('s_cmp_lg_u32 s46, 0'); E('s_cbranch_scc1 %s' % l)
    E('v_readfirstlane_b32 s92, v248'); E('v_readfirstlane_b32 s93, v249')
    E('s_nop 3')
    E('s_cmp_eq_u64 s[92:93], 0'); E('s_cselect_b32 s90, s90, s92'); E('s_cselect_b32 s91, s91, s93')
    E('v_mov_b32 v248, s90'); E('v_mov_b32 v249, s91'); E('v_mov_b32 v252, %d' % NONCE_LDS)
    E('ds_write_b64 v252, v[248:249]')
    E('s_waitcnt lgkmcnt(0)')
    E.lines.append(l + ':')
def load_nonce(E):
    E('v_mov_b32 v252, %d' % NONCE_LDS); E('ds_read_b64 v[248:249], v252'); E('s_waitcnt lgkmcnt(0)')
    E('v_readfirstlane_b32 s90, v248'); E('v_readfirstlane_b32 s91, v249')
    E('s_nop 3')
def publish(E, level):
    l = E.newlabel('pub')
    E('s_cmp_lg_u32 s46, 0'); E('s_cbranch_scc1 %s' % l)
    E('s_lshl_b32 s92, s94, 3'); E('s_add_u32 s92, s92, %d' % (FLAG_OFF + (level - 1) * 2048))
    E('v_mov_b32 v248, s90'); E('v_mov_b32 v249, s91'); E('v_mov_b32 v255, s92')
    E('s_mov_b64 exec, 1')
    E('buffer_store_dwordx2 v[248:249], v255, s[%d:%d], 0 offen sc1' % (SFL, SFL + 3))
    E('s_mov_b64 exec, -1')
    E.lines.append(l + ':')
def poll(E, nlanes):
    l = E.newlabel('poll'); d = E.newlabel('polld')
    E('s_mov_b32 s95, 0')
    E('s_mov_b64 exec, %d' % ((1 << nlanes) - 1))
    E.label(l)
    E('buffer_load_dwordx2 v[252:253], v255, s[%d:%d], 0 offen sc1' % (SFL, SFL + 3))
    E('s_waitcnt vmcnt(0)')
    E('v_cmp_ne_u64 vcc, s[90:91], v[252:253]')
    E('s_nop 1')
    E('s_cmp_eq_u64 vcc, 0'); E('s_cbranch_scc1 %s' % d)
    E('s_sleep 8')
    E('s_add_u32 s95, s95, 1'); E('s_cmp_lt_u32 s95, 0x40000'); E('s_cbranch_scc1 %s' % l)
    E.label(d)
    E('s_mov_b64 exec, -1')

def norm_ops(x, nm, rr):
    ops = []
    for i in range(4):
        ops.append('v_dot2_f32_bf16 v%d, v%d, s56, v%d' % (T + 2 * i, x + i, nm))
        ops.append('v_dot2_f32_bf16 v%d, v%d, s57, v%d' % (T + 2 * i + 1, x + i, nm))
    for i in range(4):
        ops.append('v_cvt_pk_bf16_f32 v%d, v%d, v%d' % (T + 8 + i, T + 2 * i, T + 2 * i + 1))
    for i in range(4):
        ops.append('v_lshlrev_b32 v%d, 16, v%d' % (T + 2 * i, T + 8 + i))
        ops.append('v_and_b32 v%d, v%d, v%d' % (T + 2 * i + 1, T + 12, T + 8 + i))
    for i in range(8):
        ops.append('v_mul_f32 v%d, v%d, v%d' % (T + i, T + i, rr))
    for i in range(4):
        ops.append('v_cvt_pk_bf16_f32 v%d, v%d, v%d' % (x + i, T + 2 * i, T + 2 * i + 1))
    return ops

def dma_stage(E, g):
    sb = slot_addr(g)
    if os.environ.get('NODMA'):
        E.vm.append(('st', g)); return
    if g < 7:
        E('s_mov_b64 exec, s[52:53]')
        for n in range(2):
            E('s_add_u32 m0, s59, %d' % (sb + n * 768))
            E('s_mov_b32 s50, %d' % (g * 64 * 2688 + n * 4 * 2688))
            E.vmem('buffer_load_dwordx4 v5, s[%d:%d], s50 offen lds' % (SWQ, SWQ + 3), ('st', g))
        E('s_mov_b64 exec, -1')
    else:
        tau = g - 7
        E('s_mov_b64 exec, s[54:55]')
        E('s_mov_b32 s50, %d' % (tau * 32 * 3584))
        E('s_add_u32 m0, s60, %d' % sb)
        E.vmem('buffer_load_dwordx4 v6, s[%d:%d], s50 offen lds' % (SWG, SWG + 3), ('st', g))
        E('s_add_u32 m0, s60, %d' % (sb + UPOFF))
        E.vmem('buffer_load_dwordx4 v6, s[%d:%d], s50 offen lds' % (SWU, SWU + 3), ('st', g))
        E('s_mov_b64 exec, -1')

def stage1_prologue(E):
    E('v_and_b32 v1, 63, v0'); E('v_lshrrev_b32 v12, 6, v0'); E('v_lshrrev_b32 v2, 5, v1'); E('v_and_b32 v3, 31, v1')
    E('v_readfirstlane_b32 s46, v12')
    E('s_and_b32 s49, s2, 7'); E('s_lshr_b32 s50, s2, 3'); E('s_and_b32 s44, s49, 3'); E('s_lshl_b32 s44, s44, 2'); E('s_and_b32 s51, s50, 3')
    E('s_add_u32 s44, s44, s51'); E('s_lshr_b32 s45, s49, 2'); E('s_lshl_b32 s45, s45, 3'); E('s_lshr_b32 s51, s50, 2'); E('s_add_u32 s45, s45, s51')
    E('s_lshl_b32 s94, s45, 4'); E('s_add_u32 s94, s94, s44')
    E('s_and_b32 s47, s46, 3'); E('s_lshr_b32 s48, s46, 2')
    E('s_lshl_b32 s49, s45, 7'); E('s_lshl_b32 s50, s46, 4'); E('s_add_u32 s49, s49, s50')
    E('v_lshrrev_b32 v12, 3, v1'); E('v_add_u32 v4, s49, v12'); E('v_mul_u32_u24 v4, 896, v4')
    E('v_and_b32 v13, 7, v1'); E('v_lshl_add_u32 v4, v13, 4, v4')
    E('v_add_u32 v9, %d, v4' % (8 * 896))
    E('s_waitcnt lgkmcnt(0)')
    srd(E, SX, 4, 2048 * 896)
    for rho in range(2):
        for t in range(7):
            r = XR + (rho * 7 + t) * 4
            E.vmem('buffer_load_dwordx4 v[%d:%d], v%d, s[%d:%d], 0 offen offset:%d' % (r, r + 3, 4 if rho == 0 else 9, SX, SX + 3, t * 128), ('x', rho * 7 + t))
    if CODEPF:
        lp = E.newlabel('cpf')
        E('s_lshr_b32 s49, s2, 3'); E('s_lshl_b32 s49, s49, 3'); E('s_add_u32 s49, s49, s46'); E('s_lshl_b32 s49, s49, 10')
        E('s_cmp_ge_u32 s49, L_code_end - L_code_start'); E('s_cbranch_scc1 %s' % lp)
        E('s_getpc_b64 s[50:51]')
        E.lines.append('L_pc_here:')
        E('s_sub_u32 s50, s50, L_pc_here - L_code_start'); E('s_subb_u32 s51, s51, 0')
        E('v_lshlrev_b32 v12, 4, v1'); E('v_add_u32 v12, s49, v12')
        E('global_load_dwordx4 v[244:247], v12, s[50:51]')
        E.lines.append(lp + ':')
    srd(E, SWQ, 6, 448 * 2688); srd(E, SWG, 12, 448 * 3584); srd(E, SWU, 14, 448 * 3584); srd(E, SWS, 22, WS_USED)
    srd(E, SDBG, 20, 256); srd(E, SFL, 22, 32 << 20)
    if WARM:
        E('v_mul_u32_u24 v12, 43, v1'); E('v_lshrrev_b32 v12, 7, v12')
        E('v_mul_u32_u24 v13, 3, v12'); E('v_sub_u32 v13, v1, v13')
        E('s_mul_i32 s49, s46, 7'); E('v_add_u32 v12, s49, v12'); E('v_lshlrev_b32 v12, 3, v12'); E('s_and_b32 s49, s45, 7'); E('v_add_u32 v12, s49, v12')
        E('v_lshlrev_b32 v13, 7, v13')
        E('v_min_u32 v14, 0xb8, v13'); E('v_mul_u32_u24 v15, 2688, v12'); E('v_add_u32 v14, v14, v15'); E('s_mul_i32 s49, s44, 168'); E('v_add_u32 v14, s49, v14')
        E('v_min_u32 v13, 0xd8, v13'); E('v_mul_u32_u24 v15, 3584, v12'); E('v_add_u32 v13, v13, v15'); E('s_mul_i32 s49, s44, 224'); E('v_add_u32 v13, s49, v13')
        E('s_mov_b64 exec, 0x1fffff')
        E('buffer_load_dword v244, v14, s[%d:%d], 0 offen' % (SWQ, SWQ + 3))
        E('buffer_load_dword v245, v13, s[%d:%d], 0 offen' % (SWG, SWG + 3))
        E('buffer_load_dword v246, v13, s[%d:%d], 0 offen' % (SWU, SWU + 3))
        E('s_mov_b64 exec, -1')
    nonce_issue(E)
    E('s_mov_b32 s52, -1'); E('s_mov_b32 s53, 0xffff'); E('s_mov_b32 s54, -1'); E('s_mov_b32 s55, 0xffffff')
    E('s_mov_b32 s56, 0x00003f80'); E('s_mov_b32 s57, 0x3f800000'); E('s_mov_b32 s58, 0xffff0000')
    E('s_mul_i32 s59, s46, 1536'); E('s_mul_i32 s60, s46, 896')
    E('v_mul_u32_u24 v12, 43, v1'); E('v_lshrrev_b32 v12, 9, v12'); E('v_mul_u32_u24 v13, 12, v12'); E('v_sub_u32 v13, v1, v13')
    E('s_lshl_b32 s49, s46, 3'); E('v_add_u32 v12, s49, v12'); E('v_mul_u32_u24 v5, 2688, v12'); E('v_lshl_add_u32 v5, v13, 4, v5')
    E('s_mul_i32 s49, s44, 168'); E('v_add_u32 v5, s49, v5')
    E('v_mul_u32_u24 v12, 37, v1'); E('v_lshrrev_b32 v12, 9, v12'); E('v_mul_u32_u24 v13, 14, v12'); E('v_sub_u32 v13, v1, v13')
    E('s_lshl_b32 s49, s46, 2'); E('v_add_u32 v12, s49, v12'); E('v_mul_u32_u24 v6, 3584, v12'); E('v_lshl_add_u32 v6, v13, 4, v6')
    E('s_mul_i32 s49, s44, 224'); E('v_add_u32 v6, s49, v6')
    E('v_and_b32 v12, 15, v1'); E('v_lshrrev_b32 v13, 2, v12'); E('v_lshl_add_u32 v13, v2, 3, v13')
    E('v_and_b32 v12, 3, v12'); E('v_lshlrev_b32 v12, 3, v12'); E('v_bfe_u32 v14, v1, 4, 1')
    E('v_mul_u32_u24 v7, 192, v13'); E('v_add_u32 v7, v7, v12'); E('v_lshl_add_u32 v7, v14, 5, v7')
    E('v_mul_u32_u24 v8, 224, v13'); E('v_add_u32 v8, v8, v12'); E('v_mul_u32_u24 v14, %d, v14' % UPOFF); E('v_add_u32 v8, v8, v14')
    E('s_lshl_b32 s49, s45, 7'); E('s_lshl_b32 s50, s47, 5'); E('s_add_u32 s49, s49, s50'); E('v_add_u32 v12, s49, v3')
    E('v_lshrrev_b32 v13, 4, v12'); E('v_lshlrev_b32 v240, 10, v13'); E('v_and_b32 v13, 15, v12'); E('v_lshl_add_u32 v240, v13, 4, v240')
    E('v_lshl_add_u32 v240, v2, 9, v240')
    E('s_lshl_b32 s49, s45, 2'); E('s_add_u32 s49, s49, s47'); E('s_mul_i32 s51, s49, 112'); E('s_mul_i32 s50, s44, 7'); E('s_add_u32 s51, s51, s50')
    E('s_lshl_b32 s51, s51, 10'); E('s_add_u32 s51, s51, %d' % H_OFF); E('v_lshlrev_b32 v242, 4, v1'); E('v_add_u32 v242, s51, v242')
    E('v_cmp_le_u32 s[62:63], 32, v1')
    E.fst(1)
    E('v_mov_b32 v%d, s58' % (T + 12))
    E.xmark = len(E.vm)
    E('s_mov_b32 s49, 0x3f803f80')
    for rho in range(2):
        A = T + rho * 4
        for t in range(7):
            E.vwait(('x', rho * 7 + t))
            for i in range(4):
                d = XR + (rho * 7 + t) * 4 + i
                first = (t == 0 and i < 2)
                E('v_dot2_f32_bf16 v%d, v%d, s49, %s' % (A + (i & 1), d, '0' if first else 'v%d' % (A + (i & 1))))
                E('v_dot2_f32_bf16 v%d, v%d, v%d, %s' % (A + 2 + (i & 1), d, d, '0' if first else 'v%d' % (A + 2 + (i & 1))))
    for rho in range(2):
        A = T + rho * 4
        E('v_add_f32 v%d, v%d, v%d' % (A, A, A + 1)); E('v_add_f32 v%d, v%d, v%d' % (A + 2, A + 2, A + 3))
    for pat in ('quad_perm:[1,0,3,2]', 'quad_perm:[2,3,0,1]', 'row_half_mirror'):
        for rho in range(2):
            for q in (0, 2):
                r = T + rho * 4 + q
                E('v_add_f32_dpp v%d, v%d, v%d %s row_mask:0xf bank_mask:0xf' % (r, r, r, pat))
    E('s_mov_b32 s49, 0x%x' % f32bits(1.0 / 448))
    for rho in range(2):
        A = T + rho * 4; nm = 10 + 2 * rho; rr = 11 + 2 * rho
        E('v_mul_f32 v%d, s49, v%d' % (A, A)); E('v_mul_f32 v%d, s49, v%d' % (A + 2, A + 2))
        E('v_fma_f32 v%d, -v%d, v%d, v%d' % (A + 2, A, A, A + 2)); E('v_max_f32 v%d, 0, v%d' % (A + 2, A + 2))
        E('v_cvt_pk_bf16_f32 v%d, v%d, v%d' % (A + 1, A, A + 2))
        E('v_lshlrev_b32 v%d, 16, v%d' % (A, A + 1)); E('v_and_b32 v%d, s58, v%d' % (A + 2, A + 1))
        E('v_xor_b32 v%d, 0x80000000, v%d' % (nm, A))
        E('v_add_f32 v%d, 0x%x, v%d' % (A + 2, f32bits(1e-5), A + 2))
        E('v_cvt_pk_bf16_f32 v%d, v%d, v%d' % (A + 2, A + 2, A + 2)); E('v_and_b32 v%d, s58, v%d' % (A + 2, A + 2))
        E('v_sqrt_f32 v%d, v%d' % (A + 2, A + 2))
        E('v_cvt_pk_bf16_f32 v%d, v%d, v%d' % (A + 2, A + 2, A + 2)); E('v_and_b32 v%d, s58, v%d' % (A + 2, A + 2))
        E('v_rcp_f32 v%d, v%d' % (rr, A + 2))
        E('v_fma_f32 v%d, -v%d, v%d, 2.0' % (A + 3, A + 2, rr)); E('v_mul_f32 v%d, v%d, v%d' % (rr, rr, A + 3))
    E('s_lshr_b32 s49, s46, 1'); E('s_mul_i32 s49, s49, 28672'); E('s_and_b32 s50, s46, 1'); E('s_lshl_b32 s50, s50, 4')
    E('v_lshrrev_b32 v14, 3, v1'); E('v_add_u32 v14, s50, v14'); E('v_and_b32 v15, 7, v1'); E('v_xor_b32 v14, v14, v15')
    E('v_lshlrev_b32 v14, 4, v14')
    E('v_lshrrev_b32 v9, 1, v15'); E('v_lshl_add_u32 v14, v9, 10, v14'); E('v_and_b32 v9, 1, v15'); E('v_lshl_add_u32 v14, v9, 9, v14')
    E('v_add_u32 v14, s49, v14')
    for rho in range(2):
        for t in range(7):
            x = XR + (rho * 7 + t) * 4
            if rho * 7 + t in (0, 3, 6): dma_stage(E, (rho * 7 + t) // 3)
            for o in norm_ops(x, 10 + 2 * rho, 11 + 2 * rho): E(o)
            E.lds('ds_write_b128 v14, v[%d:%d] offset:%d' % (x, x + 3, t * 4096 + rho * 128), 'xw')
    E.fst(3)
    E('s_mul_i32 s49, s47, 28672')
    for q in range(4):
        E('v_xor_b32 v%d, %d, v3' % (10 + q, 2 * q)); E('v_xor_b32 v%d, v%d, v2' % (10 + q, 10 + q)); E('v_lshlrev_b32 v%d, 4, v%d' % (10 + q, 10 + q))
        E('v_lshl_add_u32 v%d, v2, 9, v%d' % (10 + q, 10 + q)); E('v_add_u32 v%d, s49, v%d' % (10 + q, 10 + q))
    E('s_waitcnt lgkmcnt(0)'); E('s_barrier')
    for s_ in range(28):
        E.lds('ds_read_b128 v[%d:%d], v%d offset:%d' % (X(s_), X(s_) + 3, 10 + (s_ & 3), s_ * 1024), 'xr')
    E('s_waitcnt lgkmcnt(0)'); E('s_barrier')
    for g in range(3, 5): dma_stage(E, g)
    E.next_dma = 5
    E.fst(4)

QF = 244
def kv_prefetch_addr(E):
    E('v_lshlrev_b32 v243, 4, v1')
    E('v_bfe_u32 v12, v1, 4, 1'); E('v_lshlrev_b32 v12, 7, v12'); E('v_xor_b32 v241, v243, v12')

def kv_prefetch(E):
    E('s_lshl_b32 s49, s44, 17'); E('s_lshl_b32 s50, s45, 3'); E('s_mul_i32 s51, s46, 3'); E('s_add_u32 s50, s50, s51')
    E('s_mul_i32 s51, s46, 3072')
    for n in range(3):
        E('s_add_i32 s61, s50, %d' % (n - 16)); E('s_max_i32 s61, s61, 0'); E('s_lshl_b32 s61, s61, 10'); E('s_add_u32 s61, s61, s49')
        E('s_add_u32 s92, s61, %d' % (16 << 17)); E('s_add_u32 m0, s51, %d' % (KL + n * 1024))
        E.vmem('buffer_load_dwordx4 v243, s[%d:%d], s92 offen%s lds' % (SWS, SWS + 3, SC), 'kv')
        E('s_add_u32 s92, s61, %d' % (32 << 17)); E('s_add_u32 m0, s51, %d' % (VL + n * 1024))
        E.vmem('buffer_load_dwordx4 v241, s[%d:%d], s92 offen%s lds' % (SWS, SWS + 3, SC), 'kv')
    E('s_lshl_b32 s50, s45, 3'); E('s_add_u32 s50, s50, s46'); E('s_lshl_b32 s61, s50, 10'); E('s_add_u32 s61, s61, s49')
    E.vmem('buffer_load_dwordx4 v[%d:%d], v243, s[%d:%d], s61 offen%s' % (QF, QF + 3, SWS, SWS + 3, SC), 'kv')

def kv_poll_issue(E):
    l = E.newlabel('kvp')
    E('s_cmp_lg_u32 s46, 0'); E('s_cbranch_scc1 %s' % l)
    E('v_add_u32 v12, 1, v1'); E('v_lshrrev_b32 v13, 1, v12')
    E('v_subrev_u32 v13, 1, v13'); E('v_max_i32 v13, 0, v13')
    E('v_and_b32 v14, 1, v1'); E('v_sub_u32 v14, 2, v14')
    E('v_cmp_eq_u32 vcc, 0, v1'); E('v_cndmask_b32 v14, v14, 0, vcc')
    E('v_lshlrev_b32 v14, 4, v14'); E('v_add_u32 v14, s44, v14')
    E('v_mul_u32_u24 v14, 43, v14'); E('v_lshrrev_b32 v14, 7, v14')
    E('v_sub_u32 v13, s45, v13'); E('v_max_i32 v13, 0, v13')
    E('v_lshl_add_u32 v13, v13, 4, v14'); E('v_lshlrev_b32 v255, 3, v13'); E('v_add_u32 v255, %d, v255' % FLAG_OFF)
    E('s_mov_b64 exec, 0x7f')
    E('buffer_load_dwordx2 v[252:253], v255, s[%d:%d], 0 offen sc1' % (SFL, SFL + 3))
    E('s_mov_b64 exec, -1')
    E.lines.append(l + ':')
def kv_poll_check(E, nvm):
    l = E.newlabel('kvc')
    E('s_cmp_lg_u32 s46, 0'); E('s_cbranch_scc1 %s' % l)
    E('s_waitcnt vmcnt(%d)' % nvm)
    E('s_mov_b64 exec, 0x7f')
    E('v_cmp_ne_u64 vcc, s[90:91], v[252:253]')
    E('s_mov_b64 exec, -1')
    E('s_cmp_eq_u64 vcc, 0'); E('s_cbranch_scc1 %s' % l)
    poll(E, 7)
    E.lines.append(l + ':')

def stage1_path(E, ch):
    steps = [(1, s) for s in range(28)] + [(2, s) for s in range(28)]
    def stage(st): return st[1] >> 2 if st[0] == 1 else 7 + (st[1] >> 1)
    def tiles(st):
        if st[0] == 1: return [0, 1] if ch == 0 else [2]
        return [0, 1, 2] if ch == 0 else [3, 4, 5, 6]
    def wf(buf, ti): return WF + buf * 16 + ti * 4
    def setaddr(st): E('v_add_u32 v9, %d, v%d' % (slot_addr(stage(st)), 7 if st[0] == 1 else 8))
    def read(st, ti, t, buf):
        if st[0] == 1: off = (st[1] & 3) * 16 * 192 + t * 56; d2 = 768
        else: off = (st[1] & 1) * 3584 + t * 32; d2 = 896
        r = wf(buf, ti)
        E.lds('ds_read_b64_tr_b16 v[%d:%d], v9 offset:%d' % (r, r + 1, off), ('w', st, t))
        E.lds('ds_read_b64_tr_b16 v[%d:%d], v9 offset:%d' % (r + 2, r + 3, off + d2), ('w', st, t))
    E.vwait(('st', 0)); E('s_barrier')
    setaddr(steps[0])
    for ti, t in enumerate(tiles(steps[0])): read(steps[0], ti, t, 0)
    for idx, st in enumerate(steps):
        buf = idx & 1
        nxt = steps[idx + 1] if idx + 1 < len(steps) else None
        tl = tiles(st)
        for ti, t in enumerate(tl):
            E.lwait(('w', st, t))
            a = ACC + 16 * ti
            c = ('v[%d:%d]' % (a, a + 15)) if st[1] > 0 else '0'
            w = wf(buf, ti); x = X(st[1])
            E('v_mfma_f32_32x32x16_bf16 v[%d:%d], v[%d:%d], v[%d:%d], %s' % (a, a + 15, w, w + 3, x, x + 3, c))
            if ti == 0 and nxt is not None and stage(nxt) != stage(st):
                ng = stage(nxt); g = stage(st)
                if ng == 9: E.vwait('stq')
                if ng == 8: nonce_finish(E)
                if ng == 17:
                    kv_poll_check(E, len(E.vm) - E.kvp_mark)
                E.vwait(('st', ng)); E('s_barrier')
                if ng == 9: publish(E, 1)
                lim = min(g + 9 if g >= 1 else 9, 20)
                for _ in range(2):
                    if E.next_dma <= lim: dma_stage(E, E.next_dma); E.next_dma += 1
                if ng == 14:
                    kv_poll_issue(E); E.kvp_mark = len(E.vm)
                if ng == 16: kv_prefetch_addr(E)
                if ng == 17: kv_prefetch(E)
                setaddr(nxt)
            if nxt is not None:
                ntl = tiles(nxt)
                if ti < len(ntl): read(nxt, ti, ntl[ti], buf ^ 1)
                if ti == len(tl) - 1:
                    for tj in range(len(tl), len(ntl)): read(nxt, tj, ntl[tj], buf ^ 1)
        if st == (1, 27):
            E.fst(5)
            epilogue_qkv(E, ch)
    E.fst(6)
    epilogue_h(E, ch)

def epilogue_qkv(E, ch):
    P = T
    for ti, t in enumerate([0, 1] if ch == 0 else [2]):
        a = ACC + 16 * ti
        E('s_mul_i32 s49, s44, 3'); E('s_add_u32 s49, s49, %d' % t); E('s_lshl_b32 s50, s49, 17')
        E('s_cmp_ge_u32 s49, 32'); E('s_cselect_b32 s51, 0x3f803f80, 0'); E('v_mov_b32 v12, s51')
        for i in range(8):
            E('v_cvt_pk_bf16_f32 v%d, v%d, v%d' % (P + i, a + 2 * i, a + 2 * i + 1))
        E('v_cndmask_b32 v%d, v%d, v12, s[62:63]' % (P + 6, P + 6))
        E('v_cndmask_b32 v%d, v%d, v12, s[62:63]' % (P + 7, P + 7))
        E.vmem('buffer_store_dwordx4 v[%d:%d], v240, s[%d:%d], s50 offen%s' % (P, P + 3, SWS, SWS + 3, SC), 'stq')
        E.vmem('buffer_store_dwordx4 v[%d:%d], v240, s[%d:%d], s50 offen offset:256%s' % (P + 4, P + 7, SWS, SWS + 3, SC), 'stq')
        P = T + 8

def epilogue_h(E, ch):
    E('v_mov_b32 v15, s58')
    tl = [0, 1, 2] if ch == 0 else [3, 4, 5, 6]
    for ti, t in enumerate(tl):
        a = ACC + 16 * ti
        G = T; U = T + 4; H = WF + 4 * ti
        for i in range(4):
            E('v_cvt_pk_bf16_f32 v%d, v%d, v%d' % (G + i, a + 2 * i, a + 2 * i + 1))
            E('v_cvt_pk_bf16_f32 v%d, v%d, v%d' % (U + i, a + 8 + 2 * i, a + 8 + 2 * i + 1))
        for i in range(4):
            b = a + 4 * i
            E('v_lshlrev_b32 v%d, 16, v%d' % (b + 0, G + i)); E('v_and_b32 v%d, v15, v%d' % (b + 1, G + i))
            E('v_lshlrev_b32 v%d, 16, v%d' % (b + 2, U + i)); E('v_and_b32 v%d, v15, v%d' % (b + 3, U + i))
        for i in range(4):
            b = a + 4 * i
            E('v_mul_f32 v%d, v%d, v%d' % (b + 0, b + 0, b + 2)); E('v_mul_f32 v%d, v%d, v%d' % (b + 1, b + 1, b + 3))
        for i in range(4):
            b = a + 4 * i
            E('v_cvt_pk_bf16_f32 v%d, v%d, v%d' % (H + i, b + 0, b + 1))
        E('s_mov_b32 s50, %d' % (t * 1024))
        E.vmem('buffer_store_dwordx4 v[%d:%d], v242, s[%d:%d], s50 offen%s' % (H, H + 3, SWS, SWS + 3, SC), 'sth')

S0 = 32; PB = 104; KF = 144; VF = 160; OA = 176; BI = 184; NEG = 200
def stage2(E):
    E('v_and_b32 v3, 15, v1'); E('v_lshrrev_b32 v4, 4, v1')
    E('s_and_b32 s52, s46, 1'); E('s_lshl_b32 s52, s52, 4'); E('s_add_u32 s52, s52, 256')
    E('v_add_u32 v5, s52, v3'); E('v_lshlrev_b32 v6, 2, v4'); E('v_sub_u32 v5, v5, v6')
    E('s_mov_b32 s56, 0xf149f2ca'); E('v_mov_b32 v7, s56')
    for n in range(4): E('v_mov_b32 v%d, s56' % (NEG + n))
    E('s_movk_i32 s57, 256')
    for bi, tp in enumerate([0, 1, 16, 17]):
        for i in range(4):
            E('v_subrev_u32 v6, %d, v5' % (16 * tp + i)); E('v_cmp_gt_u32 vcc, s57, v6'); E('v_cndmask_b32 v%d, v7, 0, vcc' % (BI + 4 * bi + i))
    E('s_lshl_b32 s52, s45, 3'); E('s_sub_i32 s58, 16, s52'); E('s_and_b32 s52, s46, 6'); E('s_sub_i32 s58, s58, s52')
    E('s_lshr_b32 s52, s46, 1'); E('s_lshl_b32 s52, s52, 11')
    E('v_lshlrev_b32 v2, 4, v1'); E('v_add_u32 v8, s52, v2'); E('v_add_u32 v8, %d, v8' % KL)
    E('v_and_b32 v12, 15, v1'); E('v_lshrrev_b32 v13, 2, v12'); E('v_lshl_add_u32 v13, v4, 2, v13')
    E('v_bfe_u32 v14, v1, 1, 1'); E('v_lshlrev_b32 v15, 3, v14'); E('v_xor_b32 v13, v13, v15')
    E('v_lshlrev_b32 v9, 4, v13'); E('v_lshl_add_u32 v9, v14, 8, v9'); E('v_and_b32 v14, 1, v1'); E('v_lshl_add_u32 v9, v14, 3, v9')
    E('v_add_u32 v9, s52, v9')
    E('s_lshl_b32 s50, s45, 3'); E('s_add_u32 s50, s50, s46'); E('s_lshl_b32 s52, s50, 4'); E('s_add_u32 s52, s52, s44'); E('s_lshl_b32 s52, s52, 10'); E('s_add_u32 s55, s52, %d' % O_OFF)
    E('s_waitcnt vmcnt(0)'); E('s_barrier')
    publish(E, 2)
    E.fst(7)
    stage3_w_prefetch(E)
    labs = 'L_a_slow'; labj = 'L_a_join'
    E('s_cmp_gt_i32 s58, 0'); E('s_cbranch_scc1 %s' % labs)
    E.flush(0)
    lg0 = list(E.lg); vm0 = list(E.vm)
    a_scores(E, False)
    E('s_branch %s' % labj)
    E.label(labs)
    E.lg = list(lg0); E.vm = list(vm0)
    a_scores(E, True)
    E.label(labj)
    E.flush(8)
    a_rest(E)

def a_scores(E, slow):
    bi_of = {0: 0, 1: 1, 16: 2, 17: 3}
    for tp in range(3):
        E.lds('ds_read_b128 v[%d:%d], v8 offset:%d' % (KF + 4 * (tp & 3), KF + 4 * (tp & 3) + 3, tp * 1024), ('k', tp))
    for tp in range(18):
        if tp + 3 < 18:
            n = tp + 3
            E.lds('ds_read_b128 v[%d:%d], v8 offset:%d' % (KF + 4 * (n & 3), KF + 4 * (n & 3) + 3, n * 1024), ('k', n))
        E.lwait(('k', tp))
        k = KF + 4 * (tp & 3); s = S0 + 4 * tp
        c = 'v[%d:%d]' % (BI + 4 * bi_of[tp], BI + 4 * bi_of[tp] + 3) if tp in bi_of else '0'
        if slow:
            l1 = E.newlabel('sl'); l2 = E.newlabel('sl')
            E('s_cmp_gt_i32 s58, %d' % tp); E('s_cbranch_scc1 %s' % l1)
            E('v_mfma_f32_16x16x32_bf16 v[%d:%d], v[%d:%d], v[%d:%d], %s' % (s, s + 3, k, k + 3, QF, QF + 3, c))
            E('s_branch %s' % l2)
            E.lines.append(l1 + ':')
            E('v_mfma_f32_16x16x32_bf16 v[%d:%d], v[%d:%d], v[%d:%d], v[%d:%d]' % (s, s + 3, k, k + 3, QF, QF + 3, NEG, NEG + 3))
            E.lines.append(l2 + ':')
        else:
            E('v_mfma_f32_16x16x32_bf16 v[%d:%d], v[%d:%d], v[%d:%d], %s' % (s, s + 3, k, k + 3, QF, QF + 3, c))

def a_vread(E, b):
    for mt in range(2):
        vf = VF + 8 * (b & 1) + 4 * mt
        for r in range(2):
            E.lds('ds_read_b64_tr_b16 v[%d:%d], v9 offset:%d' % (vf + 2 * r, vf + 2 * r + 1, VL + (2 * b + r) * 1024 + mt * 512), ('v', b, mt))

def a_rest(E):
    a_vread(E, 0)
    n = 72
    E('v_max3_f32 v12, v%d, v%d, v%d' % (S0, S0 + 1, S0 + 2)); E('v_max3_f32 v13, v%d, v%d, v%d' % (S0 + 3, S0 + 4, S0 + 5))
    i = 6; tog = 0
    while i + 1 < n:
        r = 12 + tog
        E('v_max3_f32 v%d, v%d, v%d, v%d' % (r, r, S0 + i, S0 + i + 1)); i += 2; tog ^= 1
    E('v_max_f32 v12, v12, v13')
    E('v_mov_b32 v13, v12'); E('v_permlane16_swap_b32 v12, v13'); E('v_max_f32 v12, v12, v13')
    E('v_mov_b32 v13, v12'); E('v_permlane32_swap_b32 v12, v13'); E('v_max_f32 v12, v12, v13')
    c = (28 ** -0.5) * math.log2(math.e)
    E('v_mov_b32 v15, 0x%x' % f32bits(c)); E('v_mul_f32 v12, v15, v12')
    for b in range(9):
        for q in range(8):
            r = S0 + 8 * b + q
            E('v_fma_f32 v%d, v%d, v15, -v12' % (r, r))
        for q in range(8):
            r = S0 + 8 * b + q
            E('v_exp_f32 v%d, v%d' % (r, r))
        for q in range(4):
            r = S0 + 8 * b + 2 * q
            E('v_cvt_pk_bf16_f32 v%d, v%d, v%d' % (PB + 4 * b + q, r, r + 1))
        if b + 1 < 9: a_vread(E, b + 1)
        for mt in range(2):
            E.lwait(('v', b, mt))
            vf = VF + 8 * (b & 1) + 4 * mt; o = OA + 4 * mt; p = PB + 4 * b
            cc = 'v[%d:%d]' % (o, o + 3) if b > 0 else '0'
            E('v_mfma_f32_16x16x32_bf16 v[%d:%d], v[%d:%d], v[%d:%d], %s' % (o, o + 3, vf, vf + 3, p, p + 3, cc))
    E('v_and_b32 v13, 15, v1'); E('v_add_u32 v13, 48, v13'); E('v_lshlrev_b32 v13, 2, v13')
    E.lds('ds_bpermute_b32 v14, v13, v%d' % (OA + 4), 'bp')
    E('v_cmp_le_u32 vcc, 48, v1')
    E.lwait('bp')
    E('v_rcp_f32 v14, v14')
    for i in range(8): E('v_mul_f32 v%d, v%d, v14' % (OA + i, OA + i))
    for i in range(4): E('v_cndmask_b32 v%d, v%d, 0, vcc' % (OA + 4 + i, OA + 4 + i))
    for q in range(4): E('v_cvt_pk_bf16_f32 v%d, v%d, v%d' % (PB + q, OA + 2 * q, OA + 2 * q + 1))
    E.vmem('buffer_store_dwordx4 v[%d:%d], v2, s[%d:%d], s55 offen%s' % (PB, PB + 3, SWS, SWS + 3, SC), 'sto')

SWD, SWO, SX3, SOUT = 24, 28, 36, 32
ACC3 = 64; HB = 128; DEPTH = 3; WF3 = 176; RING = 4096
def stage3_setup(E):
    E('s_and_b32 s61, s2, 7'); E('s_lshl_b32 s61, s61, 2'); E('s_lshr_b32 s49, s2, 3'); E('s_and_b32 s49, s49, 3'); E('s_add_u32 s61, s61, s49')
    E('s_lshr_b32 s62, s2, 5')
    srd(E, SWD, 16, 1792 * 896); srd(E, SWO, 8, 448 * 896); srd(E, SX3, 4, 2048 * 896); srd(E, SOUT, 18, 2048 * 896)
    E('v_lshrrev_b32 v12, 3, v1'); E('v_mul_u32_u24 v204, 896, v12'); E('v_bfe_u32 v13, v1, 4, 1'); E('v_lshlrev_b32 v13, 2, v13')
    E('v_and_b32 v12, 7, v1'); E('v_xor_b32 v12, v12, v13'); E('v_lshl_add_u32 v204, v12, 4, v204')
    E('s_lshl_b32 s49, s62, 7'); E('v_add_u32 v204, s49, v204')
    E('s_mul_i32 s64, s46, %d' % (DEPTH * RING)); E('s_add_u32 s64, s64, %d' % RING3)
    E('s_mul_i32 s63, s46, 10'); E('s_mul_i32 s49, s46, 9'); E('s_add_u32 s49, s49, 2'); E('s_cmp_ge_u32 s46, 2'); E('s_cselect_b32 s63, s49, s63')
    E('s_sub_u32 s49, s46, 6'); E('s_lshl_b32 s49, s49, 3'); E('s_cmp_ge_u32 s46, 6'); E('s_cselect_b32 s63, s49, s63')
    E('s_mul_i32 s65, s63, %d' % (32 * 896)); E('s_mul_i32 s49, s63, %d' % (28 * 896)); E('s_cselect_b32 s65, s49, s65')

def w_issue(E, kind, u):
    slot = u % DEPTH
    wsrd = SWD if kind == 'D' else SWO; wstep = (32 if kind == 'D' else 28) * 896
    for qd in range(4):
        E('s_add_u32 m0, s64, %d' % (slot * RING + qd * 1024))
        E('s_add_u32 s52, s65, %d' % (u * wstep + qd * 8 * 896))
        E.vmem('buffer_load_dwordx4 v204, s[%d:%d], s52 offen lds' % (wsrd, wsrd + 3), ('u', u))

def stage3_w_prefetch(E):
    l = E.newlabel('s3p'); le = E.newlabel('s3pe')
    stage3_setup(E)
    E('s_cmp_ge_u32 s2, 224'); E('s_cbranch_scc1 %s' % l)
    E('s_cmp_ge_u32 s46, 6'); E('s_cbranch_scc1 %s' % le)
    vm0 = list(E.vm)
    for u in range(DEPTH): w_issue(E, 'D', u)
    E('s_branch %s' % l)
    E.lines.append(le + ':')
    E.vm = vm0
    for u in range(DEPTH): w_issue(E, 'E', u)
    E.lines.append(l + ':')
    E.flush(1)

def stage3(E):
    E('v_lshrrev_b32 v2, 5, v1'); E('v_lshlrev_b32 v3, 4, v1')
    E('v_and_b32 v12, 15, v1'); E('v_lshrrev_b32 v13, 2, v12'); E('v_lshl_add_u32 v13, v2, 2, v13'); E('v_lshlrev_b32 v5, 7, v13')
    E('v_bfe_u32 v13, v1, 4, 1'); E('v_lshlrev_b32 v13, 1, v13'); E('v_bfe_u32 v14, v1, 1, 1'); E('v_add_u32 v13, v13, v14')
    E('v_bfe_u32 v14, v1, 3, 1'); E('v_lshlrev_b32 v14, 2, v14'); E('v_xor_b32 v13, v13, v14'); E('v_lshl_add_u32 v5, v13, 4, v5')
    E('v_and_b32 v13, 1, v1'); E('v_lshl_add_u32 v5, v13, 3, v5')
    E('v_bfe_u32 v12, v1, 4, 1'); E('v_lshlrev_b32 v6, 14, v12'); E('v_lshl_add_u32 v6, v2, 8, v6'); E('v_and_b32 v12, 15, v1'); E('v_lshl_add_u32 v6, v12, 4, v6')
    l = E.newlabel('hp')
    E('s_cmp_ge_u32 s2, 224'); E('s_cbranch_scc1 %s' % l)
    E('s_cmp_lg_u32 s46, 0'); E('s_cbranch_scc1 %s' % l)
    E('s_lshr_b32 s49, s61, 1'); E('s_lshl_b32 s49, s49, 7'); E('s_add_u32 s49, s49, %d' % (FLAG_OFF + 2048))
    E('v_lshlrev_b32 v255, 3, v1'); E('v_add_u32 v255, s49, v255')
    poll(E, 16)
    E.lines.append(l + ':')
    E('s_waitcnt vmcnt(0)'); E('s_barrier')
    publish(E, 3)
    E.fst(8)
    E('s_cmp_ge_u32 s2, 224'); E('s_cbranch_scc1 L_exit')
    E('v_add_u32 v5, s64, v5')
    lE = 'L_s3_E'; l9 = 'L_s3_D9'; lj = 'L_s3_join'
    E('s_cmp_ge_u32 s46, 6'); E('s_cbranch_scc1 %s' % lE)
    E('v_xor_b32 v15, 64, v5')
    E('s_cmp_ge_u32 s46, 2'); E('s_cbranch_scc1 %s' % l9)
    E.vm = [('u', u) for u in range(DEPTH) for _ in range(4)] + ['drained']; lg0 = list(E.lg); vm0 = list(E.vm)
    E.flush(0)
    s3_stream(E, 'D', 10); E('s_branch %s' % lj)
    E.label(l9); E.vm, E.lg = list(vm0), list(lg0)
    s3_stream(E, 'D', 9); E('s_branch %s' % lj)
    E.label(lE); E.vm, E.lg = list(vm0), list(lg0)
    E('v_lshl_add_u32 v5, v2, 9, v5'); E('v_xor_b32 v15, 64, v5')
    load_nonce(E)
    E('s_lshr_b32 s49, s61, 1'); E('s_lshl_b32 s49, s49, 7'); E('s_add_u32 s49, s49, %d' % (FLAG_OFF + 4096))
    E('v_lshlrev_b32 v255, 3, v1'); E('v_add_u32 v255, s49, v255')
    poll(E, 16)
    s3_stream(E, 'E', 8)
    E.label(lj)
    E.flush(12)
    E.fst(10)
    s3_reduce(E)

def s3_stream(E, kind, nu):
    if kind == 'D':
        E('s_mul_i32 s51, s61, 224'); E('s_lshl_b32 s52, s63, 1'); E('s_add_u32 s51, s51, s52'); E('s_lshl_b32 s51, s51, 10'); E('s_add_u32 s51, s51, %d' % H_OFF)
    else:
        E('s_lshl_b32 s51, s61, 6'); E('s_add_u32 s51, s51, s63'); E('s_lshl_b32 s51, s51, 10'); E('s_add_u32 s51, s51, %d' % O_OFF)
    def issue_b(u):
        slot = u % DEPTH
        for e in range(2):
            for tt in range(2):
                r = HB + slot * 16 + (e * 2 + tt) * 4
                if kind == 'D':
                    E('s_add_u32 s52, s51, %d' % ((tt * 112 + 2 * u + e) * 1024))
                    E.vmem('buffer_load_dwordx4 v[%d:%d], v3, s[%d:%d], s52 offen%s' % (r, r + 3, SWS, SWS + 3, SC), ('u', u))
                else:
                    E('s_add_u32 s52, s51, %d' % ((tt * 32 + u) * 1024 + e * 512))
                    E.vmem('buffer_load_dwordx4 v[%d:%d], v6, s[%d:%d], s52 offen%s' % (r, r + 3, SWS, SWS + 3, SC), ('u', u))
    for u in range(min(DEPTH, nu)): issue_b(u)
    for u in range(nu):
        slot = u % DEPTH
        E.vwait(('u', u))
        if u == 0: E.fst(9)
        for e in range(2):
            for ct in range(2):
                w = WF3 + e * 8 + ct * 4
                if kind == 'D': o1 = e * 16 * 128; d2 = 8 * 128
                else: o1 = e * 16 * 128; d2 = 4 * 128
                off = slot * RING + o1
                av = 5 if ct == 0 else 15
                E.lds('ds_read_b64_tr_b16 v[%d:%d], v%d offset:%d' % (w, w + 1, av, off), ('w', u, e, ct))
                E.lds('ds_read_b64_tr_b16 v[%d:%d], v%d offset:%d' % (w + 2, w + 3, av, off + d2), ('w', u, e, ct))
        for e in range(2):
            for ct in range(2):
                E.lwait(('w', u, e, ct))
                w = WF3 + e * 8 + ct * 4
                for tt in range(2):
                    a = ACC3 + (ct * 2 + tt) * 16; b = HB + slot * 16 + (e * 2 + tt) * 4
                    c = 'v[%d:%d]' % (a, a + 15) if (u > 0 or e > 0) else '0'
                    E('v_mfma_f32_32x32x16_bf16 v[%d:%d], v[%d:%d], v[%d:%d], %s' % (a, a + 15, w, w + 3, b, b + 3, c))
        if u + DEPTH < nu:
            w_issue(E, kind, u + DEPTH); issue_b(u + DEPTH)

def s3_reduce(E):
    E('v_and_b32 v7, 31, v0'); E('v_bfe_u32 v8, v0, 5, 2'); E('v_bfe_u32 v9, v0, 7, 1'); E('v_lshrrev_b32 v10, 8, v0')
    E('s_lshl_b32 s49, s61, 6'); E('v_lshl_add_u32 v11, v10, 5, v7'); E('v_add_u32 v11, s49, v11'); E('v_mul_u32_u24 v11, 896, v11')
    E('v_lshlrev_b32 v12, 5, v9'); E('v_lshl_add_u32 v12, v8, 3, v12')
    E('s_lshl_b32 s49, s62, 7'); E('v_lshl_add_u32 v11, v12, 1, v11'); E('v_add_u32 v11, s49, v11')
    E.vmem('buffer_load_dwordx4 v[16:19], v11, s[%d:%d], 0 offen' % (SX3, SX3 + 3), 'x')
    E('s_barrier')
    E('s_lshl_b32 s49, s46, 14'); E('v_add_u32 v13, s49, v3')
    for t in range(4):
        for a in range(4):
            r = ACC3 + t * 16 + a * 4
            E.lds('ds_write_b128 v13, v[%d:%d] offset:%d' % (r, r + 3, t * 4096 + a * 1024), 'pw')
    E('s_waitcnt lgkmcnt(0)'); E('s_barrier')
    E('v_lshlrev_b32 v13, 1, v9'); E('v_add_u32 v13, v13, v10'); E('v_lshl_add_u32 v13, v13, 2, v8'); E('v_lshlrev_b32 v13, 10, v13')
    E('v_lshl_add_u32 v13, v7, 4, v13'); E('v_add_u32 v14, 0x10000, v13')
    R0 = 64
    for w in range(8):
        for hh in range(2):
            r = R0 + (w * 2 + hh) * 4
            E.lds('ds_read_b128 v[%d:%d], v%d offset:%d' % (r, r + 3, 13 if w < 4 else 14, (w & 3) * 16384 + hh * 512), ('pr', w))
    F = 32; S = 40
    E.lwait(('pr', 1))
    for i in range(8): E('v_add_f32 v%d, v%d, v%d' % (F + i, R0 + i, R0 + 8 + i))
    for w in range(2, 6):
        E.lwait(('pr', w))
        for i in range(8): E('v_add_f32 v%d, v%d, v%d' % (F + i, F + i, R0 + w * 8 + i))
    E.lwait(('pr', 7))
    for i in range(8): E('v_add_f32 v%d, v%d, v%d' % (S + i, R0 + 48 + i, R0 + 56 + i))
    E('s_mov_b32 s58, 0xffff0000'); E('s_mov_b32 s59, 0x%x' % f32bits(-math.log2(math.e)))
    for i in range(4):
        E('v_cvt_pk_bf16_f32 v%d, v%d, v%d' % (48 + i, F + 2 * i, F + 2 * i + 1)); E('v_cvt_pk_bf16_f32 v%d, v%d, v%d' % (52 + i, S + 2 * i, S + 2 * i + 1))
    for i in range(4):
        E('v_lshlrev_b32 v%d, 16, v%d' % (F + 2 * i, 48 + i)); E('v_and_b32 v%d, s58, v%d' % (F + 2 * i + 1, 48 + i))
        E('v_lshlrev_b32 v%d, 16, v%d' % (S + 2 * i, 52 + i)); E('v_and_b32 v%d, s58, v%d' % (S + 2 * i + 1, 52 + i))
    for i in range(8): E('v_mul_f32 v%d, s59, v%d' % (48 + i, F + i))
    for i in range(8): E('v_exp_f32 v%d, v%d' % (48 + i, 48 + i))
    for i in range(8): E('v_add_f32 v%d, 1.0, v%d' % (48 + i, 48 + i))
    for i in range(8): E('v_rcp_f32 v%d, v%d' % (48 + i, 48 + i))
    for i in range(8): E('v_mul_f32 v%d, v%d, v%d' % (F + i, F + i, 48 + i))
    for i in range(4): E('v_cvt_pk_bf16_f32 v%d, v%d, v%d' % (48 + i, F + 2 * i, F + 2 * i + 1))
    for i in range(4):
        E('v_lshlrev_b32 v%d, 16, v%d' % (F + 2 * i, 48 + i)); E('v_and_b32 v%d, s58, v%d' % (F + 2 * i + 1, 48 + i))
    for i in range(8): E('v_mul_f32 v%d, v%d, v%d' % (F + i, F + i, S + i))
    for i in range(4): E('v_cvt_pk_bf16_f32 v%d, v%d, v%d' % (48 + i, F + 2 * i, F + 2 * i + 1))
    E.vwait('x')
    for i in range(4):
        E('v_lshlrev_b32 v%d, 16, v%d' % (F + 2 * i, 48 + i)); E('v_and_b32 v%d, s58, v%d' % (F + 2 * i + 1, 48 + i))
        E('v_lshlrev_b32 v%d, 16, v%d' % (S + 2 * i, 16 + i)); E('v_and_b32 v%d, s58, v%d' % (S + 2 * i + 1, 16 + i))
    for i in range(8): E('v_add_f32 v%d, v%d, v%d' % (F + i, F + i, S + i))
    for i in range(4): E('v_cvt_pk_bf16_f32 v%d, v%d, v%d' % (48 + i, F + 2 * i, F + 2 * i + 1))
    E.vmem('buffer_store_dwordx4 v[48:51], v11, s[%d:%d], 0 offen' % (SOUT, SOUT + 3), 'out')

def build(out):
    E = Emit(); E.kname = 'f'; E.stamps = False
    def fst(i):
        if STAMP:
            E('s_memtime s[%d:%d]' % (66 + 2 * i, 67 + 2 * i))
            E('s_waitcnt lgkmcnt(0)')
    E.fst = fst
    E.raw('.globl %s_kernel' % NAME); E.raw('.p2align 8'); E.raw('.type %s_kernel,@function' % NAME); E.raw('%s_kernel:' % NAME)
    E.lines.append('L_code_start:')
    E('s_cmp_ge_u32 s2, 256'); E('s_cbranch_scc1 L_exit')
    E('s_load_dwordx16 s[4:19], s[0:1], 0'); E('s_load_dwordx4 s[20:23], s[0:1], 64')
    E.fst(0)
    stage1_prologue(E)
    E('s_cmp_lg_u32 s48, 0'); E('s_cbranch_scc1 L_s1_ch1')
    vm0, lg0, nd0 = list(E.vm), list(E.lg), E.next_dma
    E.flush(2)
    stage1_path(E, 0); vmA = list(E.vm)
    E('s_branch L_s1_join')
    E.label('L_s1_ch1'); E.vm, E.lg, E.next_dma = list(vm0), list(lg0), nd0
    E.flush(2)
    stage1_path(E, 1)
    E.label('L_s1_join')
    stage2(E)
    stage3(E)
    if STAMP:
        E('s_waitcnt vmcnt(0)')
        E.stamps = True
        E('s_memtime s[88:89]'); E('s_waitcnt lgkmcnt(0)')
        E.dump_stamps()
    E.label('L_exit')
    E('s_endpgm')
    E.lines.append('.p2align 10'); E.lines.append('L_code_end:')
    s = HDR + '; @launch grid=(256,1,1) block=(512,1,1) lds=%d\n' % LDS_TOTAL
    s += '.amdgcn_target "amdgcn-amd-amdhsa--gfx950"\n.text\n' + E.text()
    s += '''.section .rodata,"a"
.p2align 6
.amdhsa_kernel %s_kernel
  .amdhsa_next_free_vgpr 256
  .amdhsa_next_free_sgpr 102
  .amdhsa_accum_offset 256
  .amdhsa_group_segment_fixed_size 0
  .amdhsa_kernarg_size 80
  .amdhsa_user_sgpr_count 2
  .amdhsa_user_sgpr_kernarg_segment_ptr 1
  .amdhsa_system_sgpr_workgroup_id_x 1
.end_amdhsa_kernel
''' % NAME
    open(out, 'w').write(s)
    print("nops inserted", E.nops_inserted, "bytes", len(s))
if __name__ == '__main__':
    build(sys.argv[1] if len(sys.argv) > 1 else 'cdna_kernels/%s.s' % NAME)
```

```python
import sys, os, math, struct
sys.path.insert(0, 'gen')
from asmlib import *
STAMP = os.environ.get('STAMP', '') != ''
HDR = open('recurrent_scan__sliding_block__glu_gated_bilinear__prompt.s.ref').read().split('; Override')[0]
NAME = 'recurrent_scan__sliding_block__glu_gated_bilinear__prompt'
SC = ' sc1'
SUPER = os.environ.get('SUPER', '1') == '1'
STAGGER = os.environ.get('STAGGER', '1') == '1'
WARM = os.environ.get('WARM', '1') == '1'
CODEPF = os.environ.get('CODEPF', '0') == '1'
def f32bits(x): return struct.unpack('<I', struct.pack('<f', x))[0]

H_OFF = 6 << 20; O_OFF = 14 << 20; FLAG_OFF = 24 << 20; WS_USED = 16 << 20
SLOT = 14848; NSLOT = 10; UPOFF = 7168 + 128; XSTAGE = 114688
def slot_addr(g):
    i = g % NSLOT
    return XSTAGE + i * SLOT if i < 3 else (i - 3) * SLOT
K1_LDS = XSTAGE + 3 * SLOT
NONCE_LDS = K1_LDS
LDS_TOTAL = K1_LDS + 64
KL = XSTAGE + SLOT
VL = 0
RING3 = 24576
SX, SWQ, SWG, SWU, SWS = 24, 28, 32, 36, 40
SDBG, SFL = 84, 96
XB = 16; XR = 128; ACC = 128; WF = 192; T = 224
def X(s): return XB + 4 * s

def srd(E, d, p, nbytes):
    E('s_mov_b32 s%d, s%d' % (d, p)); E('s_and_b32 s%d, s%d, 0xffff' % (d + 1, p + 1))
    E('s_mov_b32 s%d, 0x%x' % (d + 2, nbytes)); E('s_mov_b32 s%d, 0x00020000' % (d + 3))

def nonce_issue(E):
    l = E.newlabel('non')
    E('s_cmp_lg_u32 s46, 0'); E('s_cbranch_scc1 %s' % l)
    E('s_memrealtime s[90:91]'); E('s_waitcnt lgkmcnt(0)')
    E('s_or_b32 s90, s90, 1')
    E('v_mov_b32 v248, s90'); E('v_mov_b32 v249, s91'); E('v_mov_b32 v250, 0'); E('v_mov_b32 v251, 0'); E('v_mov_b32 v252, 0')
    E('s_mov_b64 exec, 1')
    E('buffer_atomic_cmpswap_x2 v[248:251], v252, s[%d:%d], 0 offen sc0' % (SDBG, SDBG + 3))
    E('s_mov_b64 exec, -1')
    E.lines.append(l + ':')
def nonce_finish(E):
    l = E.newlabel('nonf')
    E('s_cmp_lg_u32 s46, 0'); E('s_cbranch_scc1 %s' % l)
    E('v_readfirstlane_b32 s92, v248'); E('v_readfirstlane_b32 s93, v249')
    E('s_nop 3')
    E('s_cmp_eq_u64 s[92:93], 0'); E('s_cselect_b32 s90, s90, s92'); E('s_cselect_b32 s91, s91, s93')
    E('v_mov_b32 v248, s90'); E('v_mov_b32 v249, s91'); E('v_mov_b32 v252, %d' % NONCE_LDS)
    E('ds_write_b64 v252, v[248:249]')
    E('v_mov_b32 v248, 0'); E('v_mov_b32 v249, 0')
    E('ds_write_b64 v252, v[248:249] offset:8')
    E('s_waitcnt lgkmcnt(0)')
    E.lines.append(l + ':')
def load_nonce(E):
    E('v_mov_b32 v252, %d' % NONCE_LDS); E('ds_read_b64 v[248:249], v252'); E('s_waitcnt lgkmcnt(0)')
    E('v_readfirstlane_b32 s90, v248'); E('v_readfirstlane_b32 s91, v249')
    E('s_nop 3')
def publish(E, level):
    l = E.newlabel('pub')
    E('s_cmp_lg_u32 s46, 0'); E('s_cbranch_scc1 %s' % l)
    E('s_lshl_b32 s92, s94, 3'); E('s_add_u32 s92, s92, %d' % (FLAG_OFF + (level - 1) * 2048))
    E('v_mov_b32 v248, s90'); E('v_mov_b32 v249, s91'); E('v_mov_b32 v255, s92')
    E('s_mov_b64 exec, 1')
    E('buffer_store_dwordx2 v[248:249], v255, s[%d:%d], 0 offen sc1' % (SFL, SFL + 3))
    E('s_mov_b64 exec, -1')
    E.lines.append(l + ':')
def arrive(E, level):
    l = E.newlabel('arr')
    E('v_mov_b32 v252, %d' % (NONCE_LDS + 8 + 4 * (level - 2))); E('v_mov_b32 v253, 1')
    E('s_mov_b64 exec, 1')
    E('ds_add_rtn_u32 v254, v252, v253')
    E('s_mov_b64 exec, -1')
    E('s_waitcnt lgkmcnt(0)')
    E('v_readfirstlane_b32 s92, v254')
    E('s_nop 3')
    E('s_cmp_lg_u32 s92, 7'); E('s_cbranch_scc1 %s' % l)
    load_nonce(E)
    E('s_lshl_b32 s92, s94, 3'); E('s_add_u32 s92, s92, %d' % (FLAG_OFF + (level - 1) * 2048))
    E('v_mov_b32 v248, s90'); E('v_mov_b32 v249, s91'); E('v_mov_b32 v255, s92')
    E('s_mov_b64 exec, 1')
    E('buffer_store_dwordx2 v[248:249], v255, s[%d:%d], 0 offen sc1' % (SFL, SFL + 3))
    E('s_mov_b64 exec, -1')
    E.lines.append(l + ':')
    E.flush(0)
def poll(E, nlanes):
    l = E.newlabel('poll'); d = E.newlabel('polld')
    E('s_mov_b32 s95, 0')
    E('s_mov_b64 exec, %d' % ((1 << nlanes) - 1))
    E.label(l)
    E('buffer_load_dwordx2 v[252:253], v255, s[%d:%d], 0 offen sc1' % (SFL, SFL + 3))
    E('s_waitcnt vmcnt(0)')
    E('v_cmp_ne_u64 vcc, s[90:91], v[252:253]')
    E('s_nop 1')
    E('s_cmp_eq_u64 vcc, 0'); E('s_cbranch_scc1 %s' % d)
    E('s_sleep 8')
    E('s_add_u32 s95, s95, 1'); E('s_cmp_lt_u32 s95, 0x40000'); E('s_cbranch_scc1 %s' % l)
    E.label(d)
    E('s_mov_b64 exec, -1')

def norm_ops(x, nm, rr):
    ops = []
    for i in range(4):
        ops.append('v_dot2_f32_bf16 v%d, v%d, s56, v%d' % (T + 2 * i, x + i, nm))
        ops.append('v_dot2_f32_bf16 v%d, v%d, s57, v%d' % (T + 2 * i + 1, x + i, nm))
    for i in range(4):
        ops.append('v_cvt_pk_bf16_f32 v%d, v%d, v%d' % (T + 8 + i, T + 2 * i, T + 2 * i + 1))
    for i in range(4):
        ops.append('v_lshlrev_b32 v%d, 16, v%d' % (T + 2 * i, T + 8 + i))
        ops.append('v_and_b32 v%d, v%d, v%d' % (T + 2 * i + 1, T + 12, T + 8 + i))
    for i in range(8):
        ops.append('v_mul_f32 v%d, v%d, v%d' % (T + i, T + i, rr))
    for i in range(4):
        ops.append('v_cvt_pk_bf16_f32 v%d, v%d, v%d' % (x + i, T + 2 * i, T + 2 * i + 1))
    return ops

def dma_stage(E, g):
    sb = slot_addr(g)
    if os.environ.get('NODMA'):
        E.vm.append(('st', g)); return
    if g < 7:
        E('s_mov_b64 exec, s[52:53]')
        for n in range(2):
            E('s_add_u32 m0, s59, %d' % (sb + n * 768))
            E('s_mov_b32 s50, %d' % (g * 64 * 2688 + n * 4 * 2688))
            E.vmem('buffer_load_dwordx4 v5, s[%d:%d], s50 offen lds' % (SWQ, SWQ + 3), ('st', g))
        E('s_mov_b64 exec, -1')
    else:
        tau = g - 7
        E('s_mov_b64 exec, s[54:55]')
        E('s_mov_b32 s50, %d' % (tau * 32 * 3584))
        E('s_add_u32 m0, s60, %d' % sb)
        E.vmem('buffer_load_dwordx4 v6, s[%d:%d], s50 offen lds' % (SWG, SWG + 3), ('st', g))
        E('s_add_u32 m0, s60, %d' % (sb + UPOFF))
        E.vmem('buffer_load_dwordx4 v6, s[%d:%d], s50 offen lds' % (SWU, SWU + 3), ('st', g))
        E('s_mov_b64 exec, -1')

def stage1_prologue(E):
    E('v_and_b32 v1, 63, v0'); E('v_lshrrev_b32 v12, 6, v0'); E('v_lshrrev_b32 v2, 5, v1'); E('v_and_b32 v3, 31, v1')
    E('v_readfirstlane_b32 s46, v12')
    E('s_and_b32 s49, s2, 7'); E('s_lshr_b32 s50, s2, 3'); E('s_and_b32 s44, s49, 3'); E('s_lshl_b32 s44, s44, 2'); E('s_and_b32 s51, s50, 3')
    E('s_add_u32 s44, s44, s51'); E('s_lshr_b32 s45, s49, 2'); E('s_lshl_b32 s45, s45, 3'); E('s_lshr_b32 s51, s50, 2'); E('s_add_u32 s45, s45, s51')
    E('s_lshl_b32 s94, s45, 4'); E('s_add_u32 s94, s94, s44')
    E('s_and_b32 s47, s46, 3'); E('s_lshr_b32 s48, s46, 2')
    E('s_lshl_b32 s49, s45, 7'); E('s_lshl_b32 s50, s46, 4'); E('s_add_u32 s49, s49, s50')
    E('v_lshrrev_b32 v12, 3, v1'); E('v_add_u32 v4, s49, v12'); E('v_mul_u32_u24 v4, 896, v4')
    E('v_and_b32 v13, 7, v1'); E('v_lshl_add_u32 v4, v13, 4, v4')
    E('v_add_u32 v9, %d, v4' % (8 * 896))
    E('s_waitcnt lgkmcnt(0)')
    srd(E, SX, 4, 2048 * 896)
    for rho in range(2):
        for t in range(7):
            r = XR + (rho * 7 + t) * 4
            E.vmem('buffer_load_dwordx4 v[%d:%d], v%d, s[%d:%d], 0 offen offset:%d' % (r, r + 3, 4 if rho == 0 else 9, SX, SX + 3, t * 128), ('x', rho * 7 + t))
    if CODEPF:
        lp = E.newlabel('cpf')
        E('s_lshr_b32 s49, s2, 3'); E('s_lshl_b32 s49, s49, 3'); E('s_add_u32 s49, s49, s46'); E('s_lshl_b32 s49, s49, 10')
        E('s_cmp_ge_u32 s49, L_code_end - L_code_start'); E('s_cbranch_scc1 %s' % lp)
        E('s_getpc_b64 s[50:51]')
        E.lines.append('L_pc_here:')
        E('s_sub_u32 s50, s50, L_pc_here - L_code_start'); E('s_subb_u32 s51, s51, 0')
        E('v_lshlrev_b32 v12, 4, v1'); E('v_add_u32 v12, s49, v12')
        E('global_load_dwordx4 v[244:247], v12, s[50:51]')
        E.lines.append(lp + ':')
    srd(E, SWQ, 6, 448 * 2688); srd(E, SWG, 12, 448 * 3584); srd(E, SWU, 14, 448 * 3584); srd(E, SWS, 22, WS_USED)
    srd(E, SDBG, 20, 256); srd(E, SFL, 22, 32 << 20)
    nonce_issue(E)
    E('s_mov_b32 s52, -1'); E('s_mov_b32 s53, 0xffff'); E('s_mov_b32 s54, -1'); E('s_mov_b32 s55, 0xffffff')
    E('s_mov_b32 s56, 0x00003f80'); E('s_mov_b32 s57, 0x3f800000'); E('s_mov_b32 s58, 0xffff0000')
    E('s_mul_i32 s59, s46, 1536'); E('s_mul_i32 s60, s46, 896')
    E('v_mul_u32_u24 v12, 43, v1'); E('v_lshrrev_b32 v12, 9, v12'); E('v_mul_u32_u24 v13, 12, v12'); E('v_sub_u32 v13, v1, v13')
    E('s_lshl_b32 s49, s46, 3'); E('v_add_u32 v12, s49, v12'); E('v_mul_u32_u24 v5, 2688, v12'); E('v_lshl_add_u32 v5, v13, 4, v5')
    E('s_mul_i32 s49, s44, 168'); E('v_add_u32 v5, s49, v5')
    E('v_mul_u32_u24 v12, 37, v1'); E('v_lshrrev_b32 v12, 9, v12'); E('v_mul_u32_u24 v13, 14, v12'); E('v_sub_u32 v13, v1, v13')
    E('s_lshl_b32 s49, s46, 2'); E('v_add_u32 v12, s49, v12'); E('v_mul_u32_u24 v6, 3584, v12'); E('v_lshl_add_u32 v6, v13, 4, v6')
    E('s_mul_i32 s49, s44, 224'); E('v_add_u32 v6, s49, v6')
    E('v_and_b32 v12, 15, v1'); E('v_lshrrev_b32 v13, 2, v12'); E('v_lshl_add_u32 v13, v2, 3, v13')
    E('v_and_b32 v12, 3, v12'); E('v_lshlrev_b32 v12, 3, v12'); E('v_bfe_u32 v14, v1, 4, 1')
    E('v_mul_u32_u24 v7, 192, v13'); E('v_add_u32 v7, v7, v12'); E('v_lshl_add_u32 v7, v14, 5, v7')
    E('v_mul_u32_u24 v8, 224, v13'); E('v_add_u32 v8, v8, v12'); E('v_mul_u32_u24 v14, %d, v14' % UPOFF); E('v_add_u32 v8, v8, v14')
    E('s_lshl_b32 s49, s45, 7'); E('s_lshl_b32 s50, s47, 5'); E('s_add_u32 s49, s49, s50'); E('v_add_u32 v12, s49, v3')
    E('v_lshrrev_b32 v13, 4, v12'); E('v_lshlrev_b32 v240, 10, v13'); E('v_and_b32 v13, 15, v12'); E('v_lshl_add_u32 v240, v13, 4, v240')
    E('v_lshl_add_u32 v240, v2, 9, v240')
    E('s_lshl_b32 s49, s45, 2'); E('s_add_u32 s49, s49, s47'); E('s_mul_i32 s51, s49, 112'); E('s_mul_i32 s50, s44, 7'); E('s_add_u32 s51, s51, s50')
    E('s_lshl_b32 s51, s51, 10'); E('s_add_u32 s51, s51, %d' % H_OFF); E('v_lshlrev_b32 v242, 4, v1'); E('v_add_u32 v242, s51, v242')
    E('v_cmp_le_u32 s[62:63], 32, v1')
    E('v_mov_b32 v%d, s58' % (T + 12))
    E.xmark = len(E.vm)
    E('s_mov_b32 s49, 0x3f803f80')
    for rho in range(2):
        A = T + rho * 4
        for t in range(7):
            E.vwait(('x', rho * 7 + t))
            for i in range(4):
                d = XR + (rho * 7 + t) * 4 + i
                first = (t == 0 and i < 2)
                E('v_dot2_f32_bf16 v%d, v%d, s49, %s' % (A + (i & 1), d, '0' if first else 'v%d' % (A + (i & 1))))
                E('v_dot2_f32_bf16 v%d, v%d, v%d, %s' % (A + 2 + (i & 1), d, d, '0' if first else 'v%d' % (A + 2 + (i & 1))))
    for rho in range(2):
        A = T + rho * 4
        E('v_add_f32 v%d, v%d, v%d' % (A, A, A + 1)); E('v_add_f32 v%d, v%d, v%d' % (A + 2, A + 2, A + 3))
    for pat in ('quad_perm:[1,0,3,2]', 'quad_perm:[2,3,0,1]', 'row_half_mirror'):
        for rho in range(2):
            for q in (0, 2):
                r = T + rho * 4 + q
                E('v_add_f32_dpp v%d, v%d, v%d %s row_mask:0xf bank_mask:0xf' % (r, r, r, pat))
    if WARM:
        E('v_mul_u32_u24 v16, 43, v1'); E('v_lshrrev_b32 v16, 7, v16')
        E('v_mul_u32_u24 v17, 3, v16'); E('v_sub_u32 v17, v1, v17')
        E('s_mul_i32 s49, s46, 7'); E('v_add_u32 v16, s49, v16'); E('v_lshlrev_b32 v16, 3, v16'); E('s_and_b32 s49, s45, 7'); E('v_add_u32 v16, s49, v16')
        E('v_lshlrev_b32 v17, 7, v17')
        E('v_min_u32 v18, 0xb8, v17'); E('v_mul_u32_u24 v19, 2688, v16'); E('v_add_u32 v18, v18, v19'); E('s_mul_i32 s49, s44, 168'); E('v_add_u32 v18, s49, v18')
        E('v_min_u32 v17, 0xd8, v17'); E('v_mul_u32_u24 v19, 3584, v16'); E('v_add_u32 v17, v17, v19'); E('s_mul_i32 s49, s44, 224'); E('v_add_u32 v17, s49, v17')
        E('s_mov_b64 exec, 0x1fffff')
        E('buffer_load_dword v244, v18, s[%d:%d], 0 offen' % (SWQ, SWQ + 3))
        E('buffer_load_dword v245, v17, s[%d:%d], 0 offen' % (SWG, SWG + 3))
        E('buffer_load_dword v246, v17, s[%d:%d], 0 offen' % (SWU, SWU + 3))
        E('s_mov_b64 exec, -1')
    E('s_mov_b32 s49, 0x%x' % f32bits(1.0 / 448))
    for rho in range(2):
        A = T + rho * 4; nm = 10 + 2 * rho; rr = 11 + 2 * rho
        E('v_mul_f32 v%d, s49, v%d' % (A, A)); E('v_mul_f32 v%d, s49, v%d' % (A + 2, A + 2))
        E('v_fma_f32 v%d, -v%d, v%d, v%d' % (A + 2, A, A, A + 2)); E('v_max_f32 v%d, 0, v%d' % (A + 2, A + 2))
        E('v_cvt_pk_bf16_f32 v%d, v%d, v%d' % (A + 1, A, A + 2))
        E('v_lshlrev_b32 v%d, 16, v%d' % (A, A + 1)); E('v_and_b32 v%d, s58, v%d' % (A + 2, A + 1))
        E('v_xor_b32 v%d, 0x80000000, v%d' % (nm, A))
        E('v_add_f32 v%d, 0x%x, v%d' % (A + 2, f32bits(1e-5), A + 2))
        E('v_cvt_pk_bf16_f32 v%d, v%d, v%d' % (A + 2, A + 2, A + 2)); E('v_and_b32 v%d, s58, v%d' % (A + 2, A + 2))
        E('v_sqrt_f32 v%d, v%d' % (A + 2, A + 2))
        E('v_cvt_pk_bf16_f32 v%d, v%d, v%d' % (A + 2, A + 2, A + 2)); E('v_and_b32 v%d, s58, v%d' % (A + 2, A + 2))
        E('v_rcp_f32 v%d, v%d' % (rr, A + 2))
        E('v_fma_f32 v%d, -v%d, v%d, 2.0' % (A + 3, A + 2, rr)); E('v_mul_f32 v%d, v%d, v%d' % (rr, rr, A + 3))
    E('s_lshr_b32 s49, s46, 1'); E('s_mul_i32 s49, s49, 28672'); E('s_and_b32 s50, s46, 1'); E('s_lshl_b32 s50, s50, 4')
    E('v_lshrrev_b32 v14, 3, v1'); E('v_add_u32 v14, s50, v14'); E('v_and_b32 v15, 7, v1'); E('v_xor_b32 v14, v14, v15')
    E('v_lshlrev_b32 v14, 4, v14')
    E('v_lshrrev_b32 v9, 1, v15'); E('v_lshl_add_u32 v14, v9, 10, v14'); E('v_and_b32 v9, 1, v15'); E('v_lshl_add_u32 v14, v9, 9, v14')
    E('v_add_u32 v14, s49, v14')
    for rho in range(2):
        for t in range(7):
            x = XR + (rho * 7 + t) * 4
            if rho * 7 + t in (0, 3, 6): dma_stage(E, (rho * 7 + t) // 3)
            for o in norm_ops(x, 10 + 2 * rho, 11 + 2 * rho): E(o)
            E.lds('ds_write_b128 v14, v[%d:%d] offset:%d' % (x, x + 3, t * 4096 + rho * 128), 'xw')
    E('s_mul_i32 s49, s47, 28672')
    for q in range(4):
        E('v_xor_b32 v%d, %d, v3' % (10 + q, 2 * q)); E('v_xor_b32 v%d, v%d, v2' % (10 + q, 10 + q)); E('v_lshlrev_b32 v%d, 4, v%d' % (10 + q, 10 + q))
        E('v_lshl_add_u32 v%d, v2, 9, v%d' % (10 + q, 10 + q)); E('v_add_u32 v%d, s49, v%d' % (10 + q, 10 + q))
    E('s_waitcnt lgkmcnt(0)'); E('s_barrier')
    for s_ in range(28):
        E.lds('ds_read_b128 v[%d:%d], v%d offset:%d' % (X(s_), X(s_) + 3, 10 + (s_ & 3), s_ * 1024), 'xr')
    E('s_waitcnt lgkmcnt(0)'); E('s_barrier')
    for g in range(3, 5): dma_stage(E, g)
    E.next_dma = 5
    E.fst(4)

QF = 244
def kv_prefetch_addr(E):
    E('v_lshlrev_b32 v243, 4, v1')
    E('v_bfe_u32 v12, v1, 4, 1'); E('v_lshlrev_b32 v12, 7, v12'); E('v_xor_b32 v241, v243, v12')

def kv_prefetch(E):
    E('s_lshl_b32 s49, s44, 17'); E('s_lshl_b32 s50, s45, 3'); E('s_mul_i32 s51, s46, 3'); E('s_add_u32 s50, s50, s51')
    E('s_mul_i32 s51, s46, 3072')
    for n in range(3):
        E('s_add_i32 s61, s50, %d' % (n - 16)); E('s_max_i32 s61, s61, 0'); E('s_lshl_b32 s61, s61, 10'); E('s_add_u32 s61, s61, s49')
        E('s_add_u32 s92, s61, %d' % (16 << 17)); E('s_add_u32 m0, s51, %d' % (KL + n * 1024))
        E.vmem('buffer_load_dwordx4 v243, s[%d:%d], s92 offen%s lds' % (SWS, SWS + 3, SC), 'kv')
        E('s_add_u32 s92, s61, %d' % (32 << 17)); E('s_add_u32 m0, s51, %d' % (VL + n * 1024))
        E.vmem('buffer_load_dwordx4 v241, s[%d:%d], s92 offen%s lds' % (SWS, SWS + 3, SC), 'kv')
    E('s_lshl_b32 s50, s45, 3'); E('s_add_u32 s50, s50, s46'); E('s_lshl_b32 s61, s50, 10'); E('s_add_u32 s61, s61, s49')
    E.vmem('buffer_load_dwordx4 v[%d:%d], v243, s[%d:%d], s61 offen%s' % (QF, QF + 3, SWS, SWS + 3, SC), 'kv')

def kv_poll_issue(E):
    l = E.newlabel('kvp')
    E('s_cmp_lg_u32 s46, 0'); E('s_cbranch_scc1 %s' % l)
    E('v_add_u32 v12, 1, v1'); E('v_lshrrev_b32 v13, 1, v12')
    E('v_subrev_u32 v13, 1, v13'); E('v_max_i32 v13, 0, v13')
    E('v_and_b32 v14, 1, v1'); E('v_sub_u32 v14, 2, v14')
    E('v_cmp_eq_u32 vcc, 0, v1'); E('v_cndmask_b32 v14, v14, 0, vcc')
    E('v_lshlrev_b32 v14, 4, v14'); E('v_add_u32 v14, s44, v14')
    E('v_mul_u32_u24 v14, 43, v14'); E('v_lshrrev_b32 v14, 7, v14')
    E('v_sub_u32 v13, s45, v13'); E('v_max_i32 v13, 0, v13')
    E('v_lshl_add_u32 v13, v13, 4, v14'); E('v_lshlrev_b32 v255, 3, v13'); E('v_add_u32 v255, %d, v255' % FLAG_OFF)
    E('s_mov_b64 exec, 0x7f')
    E('buffer_load_dwordx2 v[252:253], v255, s[%d:%d], 0 offen sc1' % (SFL, SFL + 3))
    E('s_mov_b64 exec, -1')
    E.lines.append(l + ':')
def kv_poll_check(E, nvm):
    l = E.newlabel('kvc')
    E('s_cmp_lg_u32 s46, 0'); E('s_cbranch_scc1 %s' % l)
    E('s_waitcnt vmcnt(%d)' % nvm)
    E('s_mov_b64 exec, 0x7f')
    E('v_cmp_ne_u64 vcc, s[90:91], v[252:253]')
    E('s_mov_b64 exec, -1')
    E('s_cmp_eq_u64 vcc, 0'); E('s_cbranch_scc1 %s' % l)
    poll(E, 7)
    E.lines.append(l + ':')

def stage1_path(E, ch):
    steps = [(1, s) for s in range(28)] + [(2, s) for s in range(28)]
    def stage(st): return st[1] >> 2 if st[0] == 1 else 7 + (st[1] >> 1)
    def tiles(st):
        if st[0] == 1: return [0, 1] if ch == 0 else [2]
        return [0, 1, 2] if ch == 0 else [3, 4, 5, 6]
    def wf(buf, ti): return WF + buf * 16 + ti * 4
    def setaddr(st): E('v_add_u32 v9, %d, v%d' % (slot_addr(stage(st)), 7 if st[0] == 1 else 8))
    def read(st, ti, t, buf):
        if st[0] == 1: off = (st[1] & 3) * 16 * 192 + t * 56; d2 = 768
        else: off = (st[1] & 1) * 3584 + t * 32; d2 = 896
        r = wf(buf, ti)
        E.lds('ds_read_b64_tr_b16 v[%d:%d], v9 offset:%d' % (r, r + 1, off), ('w', st, t))
        E.lds('ds_read_b64_tr_b16 v[%d:%d], v9 offset:%d' % (r + 2, r + 3, off + d2), ('w', st, t))
    E.deferred = None; E.defer_skip = 0
    E.vwait(('st', 0)); E('s_barrier')
    setaddr(steps[0])
    for ti, t in enumerate(tiles(steps[0])): read(steps[0], ti, t, 0)
    for idx, st in enumerate(steps):
        buf = idx & 1
        nxt = steps[idx + 1] if idx + 1 < len(steps) else None
        tl = tiles(st)
        for ti, t in enumerate(tl):
            E.lwait(('w', st, t))
            a = ACC + 16 * ti
            c = ('v[%d:%d]' % (a, a + 15)) if st[1] > 0 else '0'
            w = wf(buf, ti); x = X(st[1])
            E('v_mfma_f32_32x32x16_bf16 v[%d:%d], v[%d:%d], v[%d:%d], %s' % (a, a + 15, w, w + 3, x, x + 3, c))
            if ti == len(tl) - 1 and getattr(E, 'deferred', None) and (nxt is None or stage(nxt) == stage(st)) and E.defer_skip == 0:
                for gg in E.deferred: dma_stage(E, gg)
                E.deferred = None
            if ti == 0 and nxt is not None and stage(nxt) != stage(st):
                ng = stage(nxt); g = stage(st)
                has_bar = (ng <= 7) or (ng & 1) or not SUPER
                if has_bar:
                    if ng == 9: E.vwait('stq')
                    if ng == 7: nonce_finish(E)
                    if ng == 17: kv_poll_check(E, len(E.vm) - E.kvp_mark)
                    last_need = ng + 1 if (SUPER and ng >= 7) else ng
                    E.vwait(('st', last_need)); E('s_barrier')
                    if ng == 9: publish(E, 1)
                    lim = min(g + 9 if g >= 1 else 9, 20)
                    pend = []
                    for _ in range(3 if SUPER else 2):
                        if E.next_dma <= lim: pend.append(E.next_dma); E.next_dma += 1
                    if ch == 0 or not STAGGER:
                        for gg in pend: dma_stage(E, gg)
                    else:
                        E.deferred = pend
                    if ng == 17: kv_prefetch(E)
                if ng == 13:
                    kv_poll_issue(E); E.kvp_mark = len(E.vm)
                if ng == 16: kv_prefetch_addr(E)
                setaddr(nxt)
            if nxt is not None:
                ntl = tiles(nxt)
                if ti < len(ntl): read(nxt, ti, ntl[ti], buf ^ 1)
                if ti == len(tl) - 1:
                    for tj in range(len(tl), len(ntl)): read(nxt, tj, ntl[tj], buf ^ 1)
        if st == (1, 27):
            epilogue_qkv(E, ch)
    E.fst(6)
    epilogue_h(E, ch)

def epilogue_qkv(E, ch):
    P = T
    for ti, t in enumerate([0, 1] if ch == 0 else [2]):
        a = ACC + 16 * ti
        E('s_mul_i32 s49, s44, 3'); E('s_add_u32 s49, s49, %d' % t); E('s_lshl_b32 s50, s49, 17')
        E('s_cmp_ge_u32 s49, 32'); E('s_cselect_b32 s51, 0x3f803f80, 0'); E('v_mov_b32 v12, s51')
        for i in range(8):
            E('v_cvt_pk_bf16_f32 v%d, v%d, v%d' % (P + i, a + 2 * i, a + 2 * i + 1))
        E('v_cndmask_b32 v%d, v%d, v12, s[62:63]' % (P + 6, P + 6))
        E('v_cndmask_b32 v%d, v%d, v12, s[62:63]' % (P + 7, P + 7))
        E.vmem('buffer_store_dwordx4 v[%d:%d], v240, s[%d:%d], s50 offen%s' % (P, P + 3, SWS, SWS + 3, SC), 'stq')
        E.vmem('buffer_store_dwordx4 v[%d:%d], v240, s[%d:%d], s50 offen offset:256%s' % (P + 4, P + 7, SWS, SWS + 3, SC), 'stq')
        P = T + 8

def epilogue_h(E, ch):
    E('v_mov_b32 v15, s58')
    tl = [0, 1, 2] if ch == 0 else [3, 4, 5, 6]
    for ti, t in enumerate(tl):
        a = ACC + 16 * ti
        G = T; U = T + 4; H = WF + 4 * ti
        for i in range(4):
            E('v_cvt_pk_bf16_f32 v%d, v%d, v%d' % (G + i, a + 2 * i, a + 2 * i + 1))
            E('v_cvt_pk_bf16_f32 v%d, v%d, v%d' % (U + i, a + 8 + 2 * i, a + 8 + 2 * i + 1))
        for i in range(4):
            b = a + 4 * i
            E('v_lshlrev_b32 v%d, 16, v%d' % (b + 0, G + i)); E('v_and_b32 v%d, v15, v%d' % (b + 1, G + i))
            E('v_lshlrev_b32 v%d, 16, v%d' % (b + 2, U + i)); E('v_and_b32 v%d, v15, v%d' % (b + 3, U + i))
        for i in range(4):
            b = a + 4 * i
            E('v_mul_f32 v%d, v%d, v%d' % (b + 0, b + 0, b + 2)); E('v_mul_f32 v%d, v%d, v%d' % (b + 1, b + 1, b + 3))
        for i in range(4):
            b = a + 4 * i
            E('v_cvt_pk_bf16_f32 v%d, v%d, v%d' % (H + i, b + 0, b + 1))
        E('s_mov_b32 s50, %d' % (t * 1024))
        E.vmem('buffer_store_dwordx4 v[%d:%d], v242, s[%d:%d], s50 offen%s' % (H, H + 3, SWS, SWS + 3, SC), 'sth')

S0 = 32; PB = 104; KF = 144; VF = 160; OA = 176; BI = 184; NEG = 200
def stage2(E):
    E('v_and_b32 v3, 15, v1'); E('v_lshrrev_b32 v4, 4, v1')
    E('s_and_b32 s52, s46, 1'); E('s_lshl_b32 s52, s52, 4'); E('s_add_u32 s52, s52, 256')
    E('v_add_u32 v5, s52, v3'); E('v_lshlrev_b32 v6, 2, v4'); E('v_sub_u32 v5, v5, v6')
    E('s_mov_b32 s56, 0xf149f2ca'); E('v_mov_b32 v7, s56')
    for n in range(4): E('v_mov_b32 v%d, s56' % (NEG + n))
    E('s_movk_i32 s57, 256')
    for bi, tp in enumerate([0, 1, 16, 17]):
        for i in range(4):
            E('v_subrev_u32 v6, %d, v5' % (16 * tp + i)); E('v_cmp_gt_u32 vcc, s57, v6'); E('v_cndmask_b32 v%d, v7, 0, vcc' % (BI + 4 * bi + i))
    E('s_lshl_b32 s52, s45, 3'); E('s_sub_i32 s58, 16, s52'); E('s_and_b32 s52, s46, 6'); E('s_sub_i32 s58, s58, s52')
    E('s_lshr_b32 s52, s46, 1'); E('s_lshl_b32 s52, s52, 11')
    E('v_lshlrev_b32 v2, 4, v1'); E('v_add_u32 v8, s52, v2'); E('v_add_u32 v8, %d, v8' % KL)
    E('v_and_b32 v12, 15, v1'); E('v_lshrrev_b32 v13, 2, v12'); E('v_lshl_add_u32 v13, v4, 2, v13')
    E('v_bfe_u32 v14, v1, 1, 1'); E('v_lshlrev_b32 v15, 3, v14'); E('v_xor_b32 v13, v13, v15')
    E('v_lshlrev_b32 v9, 4, v13'); E('v_lshl_add_u32 v9, v14, 8, v9'); E('v_and_b32 v14, 1, v1'); E('v_lshl_add_u32 v9, v14, 3, v9')
    E('v_add_u32 v9, s52, v9')
    E('s_lshl_b32 s50, s45, 3'); E('s_add_u32 s50, s50, s46'); E('s_lshl_b32 s52, s50, 4'); E('s_add_u32 s52, s52, s44'); E('s_lshl_b32 s52, s52, 10'); E('s_add_u32 s55, s52, %d' % O_OFF)
    E.vwait('kv'); E('s_barrier')
    E.fst(7)
    labs = 'L_a_slow'; labj = 'L_a_join'
    E('s_cmp_gt_i32 s58, 0'); E('s_cbranch_scc1 %s' % labs)
    E.flush(0)
    lg0 = list(E.lg); vm0 = list(E.vm)
    a_scores(E, False)
    E('s_branch %s' % labj)
    E.label(labs)
    E.lg = list(lg0); E.vm = list(vm0)
    a_scores(E, True)
    E.label(labj)
    E.flush(8)
    E.vwait('sth'); arrive(E, 2)
    E.fst(2)
    stage3_setup(E)
    stage3_w_prefetch(E)
    a_rest(E)
    E.fst(5)

def a_scores(E, slow):
    bi_of = {0: 0, 1: 1, 16: 2, 17: 3}
    for tp in range(3):
        E.lds('ds_read_b128 v[%d:%d], v8 offset:%d' % (KF + 4 * (tp & 3), KF + 4 * (tp & 3) + 3, tp * 1024), ('k', tp))
    for tp in range(18):
        if tp + 3 < 18:
            n = tp + 3
            E.lds('ds_read_b128 v[%d:%d], v8 offset:%d' % (KF + 4 * (n & 3), KF + 4 * (n & 3) + 3, n * 1024), ('k', n))
        E.lwait(('k', tp))
        k = KF + 4 * (tp & 3); s = S0 + 4 * tp
        c = 'v[%d:%d]' % (BI + 4 * bi_of[tp], BI + 4 * bi_of[tp] + 3) if tp in bi_of else '0'
        if slow:
            l1 = E.newlabel('sl'); l2 = E.newlabel('sl')
            E('s_cmp_gt_i32 s58, %d' % tp); E('s_cbranch_scc1 %s' % l1)
            E('v_mfma_f32_16x16x32_bf16 v[%d:%d], v[%d:%d], v[%d:%d], %s' % (s, s + 3, k, k + 3, QF, QF + 3, c))
            E('s_branch %s' % l2)
            E.lines.append(l1 + ':')
            E('v_mfma_f32_16x16x32_bf16 v[%d:%d], v[%d:%d], v[%d:%d], v[%d:%d]' % (s, s + 3, k, k + 3, QF, QF + 3, NEG, NEG + 3))
            E.lines.append(l2 + ':')
        else:
            E('v_mfma_f32_16x16x32_bf16 v[%d:%d], v[%d:%d], v[%d:%d], %s' % (s, s + 3, k, k + 3, QF, QF + 3, c))

def a_vread(E, b):
    for mt in range(2):
        vf = VF + 8 * (b & 1) + 4 * mt
        for r in range(2):
            E.lds('ds_read_b64_tr_b16 v[%d:%d], v9 offset:%d' % (vf + 2 * r, vf + 2 * r + 1, VL + (2 * b + r) * 1024 + mt * 512), ('v', b, mt))

def a_rest(E):
    a_vread(E, 0)
    n = 72
    E('v_max3_f32 v12, v%d, v%d, v%d' % (S0, S0 + 1, S0 + 2)); E('v_max3_f32 v13, v%d, v%d, v%d' % (S0 + 3, S0 + 4, S0 + 5))
    i = 6; tog = 0
    while i + 1 < n:
        r = 12 + tog
        E('v_max3_f32 v%d, v%d, v%d, v%d' % (r, r, S0 + i, S0 + i + 1)); i += 2; tog ^= 1
    E('v_max_f32 v12, v12, v13')
    E('v_mov_b32 v13, v12'); E('v_permlane16_swap_b32 v12, v13'); E('v_max_f32 v12, v12, v13')
    E('v_mov_b32 v13, v12'); E('v_permlane32_swap_b32 v12, v13'); E('v_max_f32 v12, v12, v13')
    E.fst(3)
    c = (28 ** -0.5) * math.log2(math.e)
    E('v_mov_b32 v15, 0x%x' % f32bits(c)); E('v_mul_f32 v12, v15, v12')
    for b in range(9):
        for q in range(8):
            r = S0 + 8 * b + q
            E('v_fma_f32 v%d, v%d, v15, -v12' % (r, r))
        for q in range(8):
            r = S0 + 8 * b + q
            E('v_exp_f32 v%d, v%d' % (r, r))
        for q in range(4):
            r = S0 + 8 * b + 2 * q
            E('v_cvt_pk_bf16_f32 v%d, v%d, v%d' % (PB + 4 * b + q, r, r + 1))
        if b + 1 < 9: a_vread(E, b + 1)
        for mt in range(2):
            E.lwait(('v', b, mt))
            vf = VF + 8 * (b & 1) + 4 * mt; o = OA + 4 * mt; p = PB + 4 * b
            cc = 'v[%d:%d]' % (o, o + 3) if b > 0 else '0'
            E('v_mfma_f32_16x16x32_bf16 v[%d:%d], v[%d:%d], v[%d:%d], %s' % (o, o + 3, vf, vf + 3, p, p + 3, cc))
    E('v_and_b32 v13, 15, v1'); E('v_add_u32 v13, 48, v13'); E('v_lshlrev_b32 v13, 2, v13')
    E.lds('ds_bpermute_b32 v14, v13, v%d' % (OA + 4), 'bp')
    E('v_cmp_le_u32 vcc, 48, v1')
    E.lwait('bp')
    E('v_rcp_f32 v14, v14')
    for i in range(8): E('v_mul_f32 v%d, v%d, v14' % (OA + i, OA + i))
    for i in range(4): E('v_cndmask_b32 v%d, v%d, 0, vcc' % (OA + 4 + i, OA + 4 + i))
    for q in range(4): E('v_cvt_pk_bf16_f32 v%d, v%d, v%d' % (PB + q, OA + 2 * q, OA + 2 * q + 1))
    E.vmem('buffer_store_dwordx4 v[%d:%d], v2, s[%d:%d], s55 offen%s' % (PB, PB + 3, SWS, SWS + 3, SC), 'sto')

SWD, SWO, SX3, SOUT = 24, 28, 36, 32
ACC3 = 16; HB = 80; DEPTH = 3; WR = 128; NREG = 6; WF3 = 224; RING = 4096; VWD = 240
def stage3_setup(E):
    E('s_and_b32 s61, s2, 7'); E('s_lshl_b32 s61, s61, 2'); E('s_lshr_b32 s49, s2, 3'); E('s_and_b32 s49, s49, 3'); E('s_add_u32 s61, s61, s49')
    E('s_lshr_b32 s62, s2, 5')
    srd(E, SWD, 16, 1792 * 896); srd(E, SWO, 8, 448 * 896); srd(E, SX3, 4, 2048 * 896); srd(E, SOUT, 18, 2048 * 896)
    E('v_lshrrev_b32 v12, 3, v1'); E('v_mul_u32_u24 v240, 896, v12'); E('v_bfe_u32 v13, v1, 4, 1'); E('v_lshlrev_b32 v13, 2, v13')
    E('v_and_b32 v12, 7, v1'); E('v_xor_b32 v12, v12, v13'); E('v_lshl_add_u32 v240, v12, 4, v240')
    E('s_lshl_b32 s49, s62, 7'); E('v_add_u32 v240, s49, v240')
    E('s_mul_i32 s64, s46, %d' % (DEPTH * RING)); E('s_add_u32 s64, s64, %d' % RING3)
    E('s_mul_i32 s63, s46, 10'); E('s_mul_i32 s49, s46, 9'); E('s_add_u32 s49, s49, 2'); E('s_cmp_ge_u32 s46, 2'); E('s_cselect_b32 s63, s49, s63')
    E('s_sub_u32 s49, s46, 6'); E('s_lshl_b32 s49, s49, 3'); E('s_cmp_ge_u32 s46, 6'); E('s_cselect_b32 s63, s49, s63')
    E('s_mul_i32 s65, s63, %d' % (32 * 896)); E('s_mul_i32 s49, s63, %d' % (28 * 896)); E('s_cselect_b32 s65, s49, s65')

def w_issue(E, kind, u):
    slot = u % DEPTH
    wsrd = SWD if kind == 'D' else SWO; wstep = (32 if kind == 'D' else 28) * 896
    for qd in range(4):
        E('s_add_u32 m0, s64, %d' % (slot * RING + qd * 1024))
        E('s_add_u32 s52, s65, %d' % (u * wstep + qd * 8 * 896))
        E.vmem('buffer_load_dwordx4 v240, s[%d:%d], s52 offen lds' % (wsrd, wsrd + 3), ('u', u))

def stage3_w_prefetch(E):
    l = E.newlabel('s3p'); le = E.newlabel('s3pe')
    E('s_cmp_ge_u32 s2, 224'); E('s_cbranch_scc1 %s' % l)
    E('s_cmp_ge_u32 s46, 6'); E('s_cbranch_scc1 %s' % le)
    vm0 = list(E.vm)
    for u in range(DEPTH): w_issue(E, 'D', u)
    E('s_branch %s' % l)
    E.lines.append(le + ':')
    E.vm = vm0
    for u in range(DEPTH): w_issue(E, 'E', u)
    E.lines.append(l + ':')
    E.vm = vm0
    E.flush(1)

def stage3(E):
    E('v_lshrrev_b32 v2, 5, v1'); E('v_lshlrev_b32 v3, 4, v1')
    E('v_and_b32 v12, 15, v1'); E('v_lshrrev_b32 v13, 2, v12'); E('v_lshl_add_u32 v13, v2, 2, v13'); E('v_lshlrev_b32 v5, 7, v13')
    E('v_bfe_u32 v13, v1, 4, 1'); E('v_lshlrev_b32 v13, 1, v13'); E('v_bfe_u32 v14, v1, 1, 1'); E('v_add_u32 v13, v13, v14')
    E('v_bfe_u32 v14, v1, 3, 1'); E('v_lshlrev_b32 v14, 2, v14'); E('v_xor_b32 v13, v13, v14'); E('v_lshl_add_u32 v5, v13, 4, v5')
    E('v_and_b32 v13, 1, v1'); E('v_lshl_add_u32 v5, v13, 3, v5')
    E('v_bfe_u32 v12, v1, 4, 1'); E('v_lshlrev_b32 v6, 14, v12'); E('v_lshl_add_u32 v6, v2, 8, v6'); E('v_and_b32 v12, 15, v1'); E('v_lshl_add_u32 v6, v12, 4, v6')
    E('v_add_u32 v5, s64, v5')
    lx = E.newlabel('s3x')
    E('s_cmp_lt_u32 s2, 224'); E('s_cbranch_scc1 %s' % lx)
    E('s_waitcnt vmcnt(0)'); arrive(E, 3); E('s_branch L_exit')
    E.lines.append(lx + ':')
    lE = 'L_s3_E'; l9 = 'L_s3_D9'; lj = 'L_s3_join'
    E('s_cmp_ge_u32 s46, 6'); E('s_cbranch_scc1 %s' % lE)
    E('v_xor_b32 v15, 64, v5')
    E('s_cmp_ge_u32 s46, 2'); E('s_cbranch_scc1 %s' % l9)
    lg0 = list(E.lg)
    vm0 = [('w', u) for u in range(DEPTH) for _ in range(4)] + ['sto']
    E.vm = list(vm0)
    E.flush(0)
    s3_stream(E, 'D', 10); E('s_branch %s' % lj)
    E.label(l9); E.vm, E.lg = list(vm0), list(lg0)
    s3_stream(E, 'D', 9); E('s_branch %s' % lj)
    E.label(lE); E.vm, E.lg = list(vm0), list(lg0)
    E('v_lshl_add_u32 v5, v2, 9, v5'); E('v_xor_b32 v15, 64, v5')
    s3_stream(E, 'E', 8)
    E.label(lj)
    E.flush(12)
    E.fst(10)
    s3_reduce(E)

def w3_issue(E, kind, u):
    slot = u % DEPTH
    wsrd = SWD if kind == 'D' else SWO; wstep = (32 if kind == 'D' else 28) * 896
    for qd in range(4):
        E('s_add_u32 m0, s64, %d' % (slot * RING + qd * 1024))
        E('s_add_u32 s52, s65, %d' % (u * wstep + qd * 8 * 896))
        E.vmem('buffer_load_dwordx4 v240, s[%d:%d], s52 offen lds' % (wsrd, wsrd + 3), ('w', u))

def w3_read(E, kind, u, dst):
    slot = u % DEPTH
    for e in range(2):
        for ct in range(2):
            w = dst + e * 8 + ct * 4
            o1 = e * 16 * 128; d2 = (8 if kind == 'D' else 4) * 128
            off = slot * RING + o1
            av = 5 if ct == 0 else 15
            E.lds('ds_read_b64_tr_b16 v[%d:%d], v%d offset:%d' % (w, w + 1, av, off), ('wr', u, e, ct))
            E.lds('ds_read_b64_tr_b16 v[%d:%d], v%d offset:%d' % (w + 2, w + 3, av, off + d2), ('wr', u, e, ct))

def s3_stream(E, kind, nu):
    for u in range(NREG):
        E.vwait(('w', u))
        w3_read(E, kind, u, WR + 16 * u)
        if u == 0:
            E.vwait('sto'); arrive(E, 3)
        E('s_waitcnt lgkmcnt(0)')
        if u + DEPTH < nu and u + DEPTH < NREG + DEPTH: w3_issue(E, kind, u + DEPTH)
    E.fst(1)
    load_nonce(E)
    E('s_lshr_b32 s49, s61, 1'); E('s_lshl_b32 s49, s49, 7'); E('s_add_u32 s49, s49, %d' % (FLAG_OFF + (2048 if kind == 'D' else 4096)))
    if kind == 'D':
        E('s_lshl_b32 s50, s63, 5'); E('s_mul_i32 s51, s50, 9363'); E('s_lshr_b32 s51, s51, 20')
        E('s_add_u32 s50, s50, %d' % (nu * 32 - 1)); E('s_mul_i32 s50, s50, 9363'); E('s_lshr_b32 s50, s50, 20')
        E('v_add_u32 v255, s51, v1'); E('v_min_u32 v255, s50, v255')
        npl = 4
    else:
        E('v_add_u32 v255, s63, v1')
        npl = 8
    E('v_lshlrev_b32 v255, 3, v255'); E('v_add_u32 v255, s49, v255')
    poll(E, npl)
    E.vm.append('drained');
    E.fst(8)
    if kind == 'D':
        E('s_mul_i32 s51, s61, 224'); E('s_lshl_b32 s52, s63, 1'); E('s_add_u32 s51, s51, s52'); E('s_lshl_b32 s51, s51, 10'); E('s_add_u32 s51, s51, %d' % H_OFF)
    else:
        E('s_lshl_b32 s51, s61, 6'); E('s_add_u32 s51, s51, s63'); E('s_lshl_b32 s51, s51, 10'); E('s_add_u32 s51, s51, %d' % O_OFF)
    def issue_b(u):
        slot = u % DEPTH
        for e in range(2):
            for tt in range(2):
                r = HB + slot * 16 + (e * 2 + tt) * 4
                if kind == 'D':
                    E('s_add_u32 s52, s51, %d' % ((tt * 112 + 2 * u + e) * 1024))
                    E.vmem('buffer_load_dwordx4 v[%d:%d], v3, s[%d:%d], s52 offen%s' % (r, r + 3, SWS, SWS + 3, SC), ('h', u))
                else:
                    E('s_add_u32 s52, s51, %d' % ((tt * 32 + u) * 1024 + e * 512))
                    E.vmem('buffer_load_dwordx4 v[%d:%d], v6, s[%d:%d], s52 offen%s' % (r, r + 3, SWS, SWS + 3, SC), ('h', u))
    for u in range(min(DEPTH, nu)): issue_b(u)
    for u in range(nu):
        slot = u % DEPTH
        if u >= NREG:
            if ('w', u) in E.vm[E.vm.index('drained'):]: E.vwait(('w', u))
            w3_read(E, kind, u, WF3)
        E.vwait(('h', u))
        if u == 0: E.fst(9)
        for e in range(2):
            for ct in range(2):
                if u >= NREG: E.lwait(('wr', u, e, ct))
                w = (WR + 16 * u if u < NREG else WF3) + e * 8 + ct * 4
                for tt in range(2):
                    a = ACC3 + (ct * 2 + tt) * 16; b = HB + slot * 16 + (e * 2 + tt) * 4
                    c = 'v[%d:%d]' % (a, a + 15) if (u > 0 or e > 0) else '0'
                    E('v_mfma_f32_32x32x16_bf16 v[%d:%d], v[%d:%d], v[%d:%d], %s' % (a, a + 15, w, w + 3, b, b + 3, c))
        if u >= NREG and u + DEPTH < nu: w3_issue(E, kind, u + DEPTH)
        if u + DEPTH < nu: issue_b(u + DEPTH)

def s3_reduce(E):
    E('v_and_b32 v7, 31, v0'); E('v_bfe_u32 v8, v0, 5, 2'); E('v_bfe_u32 v9, v0, 7, 1'); E('v_lshrrev_b32 v10, 8, v0')
    E('s_lshl_b32 s49, s61, 6'); E('v_lshl_add_u32 v11, v10, 5, v7'); E('v_add_u32 v11, s49, v11'); E('v_mul_u32_u24 v11, 896, v11')
    E('v_lshlrev_b32 v12, 5, v9'); E('v_lshl_add_u32 v12, v8, 3, v12')
    E('s_lshl_b32 s49, s62, 7'); E('v_lshl_add_u32 v11, v12, 1, v11'); E('v_add_u32 v11, s49, v11')
    E.vmem('buffer_load_dwordx4 v[244:247], v11, s[%d:%d], 0 offen' % (SX3, SX3 + 3), 'x')
    E('s_barrier')
    E('s_lshl_b32 s49, s46, 14'); E('v_add_u32 v13, s49, v3')
    for t in range(4):
        for a in range(4):
            r = ACC3 + t * 16 + a * 4
            E.lds('ds_write_b128 v13, v[%d:%d] offset:%d' % (r, r + 3, t * 4096 + a * 1024), 'pw')
    E('s_waitcnt lgkmcnt(0)'); E('s_barrier')
    E('v_lshlrev_b32 v13, 1, v9'); E('v_add_u32 v13, v13, v10'); E('v_lshl_add_u32 v13, v13, 2, v8'); E('v_lshlrev_b32 v13, 10, v13')
    E('v_lshl_add_u32 v13, v7, 4, v13'); E('v_add_u32 v14, 0x10000, v13')
    R0 = 64
    for w in range(8):
        for hh in range(2):
            r = R0 + (w * 2 + hh) * 4
            E.lds('ds_read_b128 v[%d:%d], v%d offset:%d' % (r, r + 3, 13 if w < 4 else 14, (w & 3) * 16384 + hh * 512), ('pr', w))
    F = 32; S = 40
    E.lwait(('pr', 1))
    for i in range(8): E('v_add_f32 v%d, v%d, v%d' % (F + i, R0 + i, R0 + 8 + i))
    for w in range(2, 6):
        E.lwait(('pr', w))
        for i in range(8): E('v_add_f32 v%d, v%d, v%d' % (F + i, F + i, R0 + w * 8 + i))
    E.lwait(('pr', 7))
    for i in range(8): E('v_add_f32 v%d, v%d, v%d' % (S + i, R0 + 48 + i, R0 + 56 + i))
    E('s_mov_b32 s58, 0xffff0000'); E('s_mov_b32 s59, 0x%x' % f32bits(-math.log2(math.e)))
    for i in range(4):
        E('v_cvt_pk_bf16_f32 v%d, v%d, v%d' % (48 + i, F + 2 * i, F + 2 * i + 1)); E('v_cvt_pk_bf16_f32 v%d, v%d, v%d' % (52 + i, S + 2 * i, S + 2 * i + 1))
    for i in range(4):
        E('v_lshlrev_b32 v%d, 16, v%d' % (F + 2 * i, 48 + i)); E('v_and_b32 v%d, s58, v%d' % (F + 2 * i + 1, 48 + i))
        E('v_lshlrev_b32 v%d, 16, v%d' % (S + 2 * i, 52 + i)); E('v_and_b32 v%d, s58, v%d' % (S + 2 * i + 1, 52 + i))
    for i in range(8): E('v_mul_f32 v%d, s59, v%d' % (48 + i, F + i))
    for i in range(8): E('v_exp_f32 v%d, v%d' % (48 + i, 48 + i))
    for i in range(8): E('v_add_f32 v%d, 1.0, v%d' % (48 + i, 48 + i))
    for i in range(8): E('v_rcp_f32 v%d, v%d' % (48 + i, 48 + i))
    for i in range(8): E('v_mul_f32 v%d, v%d, v%d' % (F + i, F + i, 48 + i))
    for i in range(4): E('v_cvt_pk_bf16_f32 v%d, v%d, v%d' % (48 + i, F + 2 * i, F + 2 * i + 1))
    for i in range(4):
        E('v_lshlrev_b32 v%d, 16, v%d' % (F + 2 * i, 48 + i)); E('v_and_b32 v%d, s58, v%d' % (F + 2 * i + 1, 48 + i))
    for i in range(8): E('v_mul_f32 v%d, v%d, v%d' % (F + i, F + i, S + i))
    for i in range(4): E('v_cvt_pk_bf16_f32 v%d, v%d, v%d' % (48 + i, F + 2 * i, F + 2 * i + 1))
    E.vwait('x')
    for i in range(4):
        E('v_lshlrev_b32 v%d, 16, v%d' % (F + 2 * i, 48 + i)); E('v_and_b32 v%d, s58, v%d' % (F + 2 * i + 1, 48 + i))
        E('v_lshlrev_b32 v%d, 16, v%d' % (S + 2 * i, 244 + i)); E('v_and_b32 v%d, s58, v%d' % (S + 2 * i + 1, 244 + i))
    for i in range(8): E('v_add_f32 v%d, v%d, v%d' % (F + i, F + i, S + i))
    for i in range(4): E('v_cvt_pk_bf16_f32 v%d, v%d, v%d' % (48 + i, F + 2 * i, F + 2 * i + 1))
    E.vmem('buffer_store_dwordx4 v[48:51], v11, s[%d:%d], 0 offen' % (SOUT, SOUT + 3), 'out')

def build(out):
    E = Emit(); E.kname = 'f'; E.stamps = False
    def fst(i):
        if STAMP:
            E('s_memtime s[%d:%d]' % (66 + 2 * i, 67 + 2 * i))
            E('s_waitcnt lgkmcnt(0)')
    E.fst = fst
    E.raw('.globl %s_kernel' % NAME); E.raw('.p2align 8'); E.raw('.type %s_kernel,@function' % NAME); E.raw('%s_kernel:' % NAME)
    E.lines.append('L_code_start:')
    E('s_cmp_ge_u32 s2, 256'); E('s_cbranch_scc1 L_exit')
    E('s_load_dwordx16 s[4:19], s[0:1], 0'); E('s_load_dwordx4 s[20:23], s[0:1], 64')
    E.fst(0)
    stage1_prologue(E)
    E('s_cmp_lg_u32 s48, 0'); E('s_cbranch_scc1 L_s1_ch1')
    vm0, lg0, nd0 = list(E.vm), list(E.lg), E.next_dma
    E.flush(2)
    stage1_path(E, 0); vmA = list(E.vm)
    E('s_branch L_s1_join')
    E.label('L_s1_ch1'); E.vm, E.lg, E.next_dma = list(vm0), list(lg0), nd0
    E.flush(2)
    stage1_path(E, 1)
    E.label('L_s1_join')
    stage2(E)
    stage3(E)
    if STAMP:
        E('s_waitcnt vmcnt(0)')
        E.stamps = True
        E('s_memtime s[88:89]'); E('s_waitcnt lgkmcnt(0)')
        E.dump_stamps()
    E.label('L_exit')
    E('s_endpgm')
    E.lines.append('.p2align 10'); E.lines.append('L_code_end:')
    s = HDR + '; @launch grid=(256,1,1) block=(512,1,1) lds=%d\n' % LDS_TOTAL
    s += '.amdgcn_target "amdgcn-amd-amdhsa--gfx950"\n.text\n' + E.text()
    s += '''.section .rodata,"a"
.p2align 6
.amdhsa_kernel %s_kernel
  .amdhsa_next_free_vgpr 256
  .amdhsa_next_free_sgpr 102
  .amdhsa_accum_offset 256
  .amdhsa_group_segment_fixed_size 0
  .amdhsa_kernarg_size 80
  .amdhsa_user_sgpr_count 2
  .amdhsa_user_sgpr_kernarg_segment_ptr 1
  .amdhsa_system_sgpr_workgroup_id_x 1
.end_amdhsa_kernel
''' % NAME
    open(out, 'w').write(s)
    print("nops inserted", E.nops_inserted, "bytes", len(s))
if __name__ == '__main__':
    build(sys.argv[1] if len(sys.argv) > 1 else 'cdna_kernels/%s.s' % NAME)
```

```python
import sys, os, math, struct
sys.path.insert(0, 'gen')
from asmlib import *
STAMP = os.environ.get('STAMP', '') != ''
HDR = open('recurrent_scan__sliding_block__glu_gated_bilinear__prompt.s.ref').read().split('; Override')[0]
NAME = 'recurrent_scan__sliding_block__glu_gated_bilinear__prompt'
SC = ' sc1'
LDF = os.environ.get('LDF', ' sc1')
SOLO = os.environ.get('SOLO', '0') == '1'
SUPER = os.environ.get('SUPER', '1') == '1'
STAGGER = os.environ.get('STAGGER', '1') == '1'
WARM = os.environ.get('WARM', '1') == '1'
CODEPF = os.environ.get('CODEPF', '0') == '1'
def f32bits(x): return struct.unpack('<I', struct.pack('<f', x))[0]

H_OFF = 6 << 20; O_OFF = 14 << 20; FLAG_OFF = 24 << 20; WS_USED = 16 << 20
SLOT = 14848; NSLOT = 10; UPOFF = 7168 + 128; XSTAGE = 114688
def slot_addr(g):
    i = g % NSLOT
    return XSTAGE + i * SLOT if i < 3 else (i - 3) * SLOT
K1_LDS = XSTAGE + 3 * SLOT
NONCE_LDS = K1_LDS
LDS_TOTAL = K1_LDS + 64
KL = XSTAGE + SLOT
VL = 0
RING3 = 24576
SX, SWQ, SWG, SWU, SWS = 24, 28, 32, 36, 40
SDBG, SFL = 84, 96
XB = 16; XR = 128; ACC = 128; WF = 192; T = 224
def X(s): return XB + 4 * s

def srd(E, d, p, nbytes):
    E('s_mov_b32 s%d, s%d' % (d, p)); E('s_and_b32 s%d, s%d, 0xffff' % (d + 1, p + 1))
    E('s_mov_b32 s%d, 0x%x' % (d + 2, nbytes)); E('s_mov_b32 s%d, 0x00020000' % (d + 3))

def nonce_issue(E):
    l = E.newlabel('non')
    E('s_cmp_lg_u32 s46, 0'); E('s_cbranch_scc1 %s' % l)
    E('s_memrealtime s[90:91]'); E('s_waitcnt lgkmcnt(0)')
    E('s_or_b32 s90, s90, 1')
    E('v_mov_b32 v248, s90'); E('v_mov_b32 v249, s91'); E('v_mov_b32 v250, 0'); E('v_mov_b32 v251, 0'); E('v_mov_b32 v252, 0')
    E('s_mov_b64 exec, 1')
    E('buffer_atomic_cmpswap_x2 v[248:251], v252, s[%d:%d], 0 offen sc0' % (SDBG, SDBG + 3))
    E('s_mov_b64 exec, -1')
    E.lines.append(l + ':')
def nonce_finish(E):
    l = E.newlabel('nonf')
    E('s_cmp_lg_u32 s46, 0'); E('s_cbranch_scc1 %s' % l)
    E('v_readfirstlane_b32 s92, v248'); E('v_readfirstlane_b32 s93, v249')
    E('s_nop 3')
    E('s_cmp_eq_u64 s[92:93], 0'); E('s_cselect_b32 s90, s90, s92'); E('s_cselect_b32 s91, s91, s93')
    E('v_mov_b32 v248, s90'); E('v_mov_b32 v249, s91'); E('v_mov_b32 v252, %d' % NONCE_LDS)
    E('ds_write_b64 v252, v[248:249]')
    E('v_mov_b32 v248, 0'); E('v_mov_b32 v249, 0')
    E('ds_write_b64 v252, v[248:249] offset:8')
    E('s_waitcnt lgkmcnt(0)')
    E.lines.append(l + ':')
def load_nonce(E):
    E('v_mov_b32 v252, %d' % NONCE_LDS); E('ds_read_b64 v[248:249], v252'); E('s_waitcnt lgkmcnt(0)')
    E('v_readfirstlane_b32 s90, v248'); E('v_readfirstlane_b32 s91, v249')
    E('s_nop 3')
def publish(E, level):
    l = E.newlabel('pub')
    E('s_cmp_lg_u32 s46, 0'); E('s_cbranch_scc1 %s' % l)
    E('s_lshl_b32 s92, s94, 3'); E('s_add_u32 s92, s92, %d' % (FLAG_OFF + (level - 1) * 2048))
    E('v_mov_b32 v248, s90'); E('v_mov_b32 v249, s91'); E('v_mov_b32 v255, s92')
    E('s_mov_b64 exec, 1')
    E('buffer_store_dwordx2 v[248:249], v255, s[%d:%d], 0 offen sc1' % (SFL, SFL + 3))
    E('s_mov_b64 exec, -1')
    E.lines.append(l + ':')
def arrive(E, level):
    l = E.newlabel('arr')
    E('v_mov_b32 v252, %d' % (NONCE_LDS + 8 + 4 * (level - 2))); E('v_mov_b32 v253, 1')
    E('s_mov_b64 exec, 1')
    E('ds_add_rtn_u32 v254, v252, v253')
    E('s_mov_b64 exec, -1')
    E('s_waitcnt lgkmcnt(0)')
    E('v_readfirstlane_b32 s92, v254')
    E('s_nop 3')
    E('s_cmp_lg_u32 s92, 7'); E('s_cbranch_scc1 %s' % l)
    load_nonce(E)
    E('s_lshl_b32 s92, s94, 3'); E('s_add_u32 s92, s92, %d' % (FLAG_OFF + (level - 1) * 2048))
    E('v_mov_b32 v248, s90'); E('v_mov_b32 v249, s91'); E('v_mov_b32 v255, s92')
    E('s_mov_b64 exec, 1')
    E('buffer_store_dwordx2 v[248:249], v255, s[%d:%d], 0 offen sc1' % (SFL, SFL + 3))
    E('s_mov_b64 exec, -1')
    E.lines.append(l + ':')
    E.flush(0)
def poll(E, nlanes):
    l = E.newlabel('poll'); d = E.newlabel('polld')
    E('s_mov_b32 s95, 0')
    E('s_mov_b64 exec, %d' % ((1 << nlanes) - 1))
    E.label(l)
    E('buffer_load_dwordx2 v[252:253], v255, s[%d:%d], 0 offen sc1' % (SFL, SFL + 3))
    E('s_waitcnt vmcnt(0)')
    E('v_cmp_ne_u64 vcc, s[90:91], v[252:253]')
    E('s_nop 1')
    E('s_cmp_eq_u64 vcc, 0'); E('s_cbranch_scc1 %s' % d)
    E('s_sleep 8')
    E('s_add_u32 s95, s95, 1'); E('s_cmp_lt_u32 s95, 0x40000'); E('s_cbranch_scc1 %s' % l)
    E.label(d)
    E('s_mov_b64 exec, -1')

def norm_ops(x, nm, rr):
    ops = []
    for i in range(4):
        ops.append('v_dot2_f32_bf16 v%d, v%d, s56, v%d' % (T + 2 * i, x + i, nm))
        ops.append('v_dot2_f32_bf16 v%d, v%d, s57, v%d' % (T + 2 * i + 1, x + i, nm))
    for i in range(4):
        ops.append('v_cvt_pk_bf16_f32 v%d, v%d, v%d' % (T + 8 + i, T + 2 * i, T + 2 * i + 1))
    for i in range(4):
        ops.append('v_lshlrev_b32 v%d, 16, v%d' % (T + 2 * i, T + 8 + i))
        ops.append('v_and_b32 v%d, v%d, v%d' % (T + 2 * i + 1, T + 12, T + 8 + i))
    for i in range(8):
        ops.append('v_mul_f32 v%d, v%d, v%d' % (T + i, T + i, rr))
    for i in range(4):
        ops.append('v_cvt_pk_bf16_f32 v%d, v%d, v%d' % (x + i, T + 2 * i, T + 2 * i + 1))
    return ops

def dma_stage(E, g, role=None):
    sb = slot_addr(g)
    if os.environ.get('NODMA') or role == 'skip':
        E.vm.append(('phantom', ('st', g))); return
    halves = (0,) if role is None else (0, 1)
    if g < 7:
        E('s_mov_b64 exec, s[52:53]')
        for hf in halves:
            for n in range(2):
                E('s_add_u32 m0, %s, %d' % ('s59' if role is None else 's65', sb + n * 768 + hf * 4 * 1536))
                E('s_mov_b32 s50, %d' % (g * 64 * 2688 + n * 4 * 2688 + hf * 32 * 2688))
                E.vmem('buffer_load_dwordx4 %s, s[%d:%d], s50 offen lds' % ('v5' if role is None else 'v238', SWQ, SWQ + 3), ('st', g))
        E('s_mov_b64 exec, -1')
    else:
        tau = g - 7
        E('s_mov_b64 exec, s[54:55]')
        for hf in halves:
            E('s_mov_b32 s50, %d' % (tau * 32 * 3584 + hf * 16 * 3584))
            E('s_add_u32 m0, %s, %d' % ('s60' if role is None else 's60', sb + hf * 4 * 896))
            E.vmem('buffer_load_dwordx4 v6, s[%d:%d], s50 offen lds' % (SWG, SWG + 3), ('st', g))
            E('s_add_u32 m0, s60, %d' % (sb + UPOFF + hf * 4 * 896))
            E.vmem('buffer_load_dwordx4 v6, s[%d:%d], s50 offen lds' % (SWU, SWU + 3), ('st', g))
        E('s_mov_b64 exec, -1')

def stage1_prologue(E):
    E('v_and_b32 v1, 63, v0'); E('v_lshrrev_b32 v12, 6, v0'); E('v_lshrrev_b32 v2, 5, v1'); E('v_and_b32 v3, 31, v1')
    E('v_readfirstlane_b32 s46, v12')
    E('s_and_b32 s49, s2, 7'); E('s_lshr_b32 s50, s2, 3'); E('s_and_b32 s44, s49, 3'); E('s_lshl_b32 s44, s44, 2'); E('s_and_b32 s51, s50, 3')
    E('s_add_u32 s44, s44, s51'); E('s_lshr_b32 s45, s49, 2'); E('s_lshl_b32 s45, s45, 3'); E('s_lshr_b32 s51, s50, 2'); E('s_add_u32 s45, s45, s51')
    E('s_lshl_b32 s94, s45, 4'); E('s_add_u32 s94, s94, s44')
    E('s_and_b32 s47, s46, 3'); E('s_lshr_b32 s48, s46, 2')
    E('s_lshl_b32 s49, s45, 7'); E('s_lshl_b32 s50, s46, 4'); E('s_add_u32 s49, s49, s50')
    E('v_lshrrev_b32 v12, 3, v1'); E('v_add_u32 v4, s49, v12'); E('v_mul_u32_u24 v4, 896, v4')
    E('v_and_b32 v13, 7, v1'); E('v_lshl_add_u32 v4, v13, 4, v4')
    E('v_add_u32 v9, %d, v4' % (8 * 896))
    E('s_waitcnt lgkmcnt(0)')
    srd(E, SX, 4, 2048 * 896)
    for rho in range(2):
        for t in range(7):
            r = XR + (rho * 7 + t) * 4
            E.vmem('buffer_load_dwordx4 v[%d:%d], v%d, s[%d:%d], 0 offen offset:%d' % (r, r + 3, 4 if rho == 0 else 9, SX, SX + 3, t * 128), ('x', rho * 7 + t))
    if CODEPF:
        lp = E.newlabel('cpf')
        E('s_lshr_b32 s49, s2, 3'); E('s_lshl_b32 s49, s49, 3'); E('s_add_u32 s49, s49, s46'); E('s_lshl_b32 s49, s49, 10')
        E('s_cmp_ge_u32 s49, L_code_end - L_code_start'); E('s_cbranch_scc1 %s' % lp)
        E('s_getpc_b64 s[50:51]')
        E.lines.append('L_pc_here:')
        E('s_sub_u32 s50, s50, L_pc_here - L_code_start'); E('s_subb_u32 s51, s51, 0')
        E('v_lshlrev_b32 v12, 4, v1'); E('v_add_u32 v12, s49, v12')
        E('global_load_dwordx4 v[244:247], v12, s[50:51]')
        E.lines.append(lp + ':')
    srd(E, SWQ, 6, 448 * 2688); srd(E, SWG, 12, 448 * 3584); srd(E, SWU, 14, 448 * 3584); srd(E, SWS, 22, WS_USED)
    srd(E, SDBG, 20, 256); srd(E, SFL, 22, 32 << 20)
    nonce_issue(E)
    E('s_mov_b32 s52, -1'); E('s_mov_b32 s53, 0xffff'); E('s_mov_b32 s54, -1'); E('s_mov_b32 s55, 0xffffff')
    E('s_mov_b32 s56, 0x00003f80'); E('s_mov_b32 s57, 0x3f800000'); E('s_mov_b32 s58, 0xffff0000')
    E('s_mul_i32 s59, s46, 1536'); E('s_mul_i32 s60, s46, 896')
    E('v_mul_u32_u24 v12, 43, v1'); E('v_lshrrev_b32 v12, 9, v12'); E('v_mul_u32_u24 v13, 12, v12'); E('v_sub_u32 v13, v1, v13')
    E('s_lshl_b32 s49, s46, 3'); E('v_add_u32 v12, s49, v12'); E('v_mul_u32_u24 v5, 2688, v12'); E('v_lshl_add_u32 v5, v13, 4, v5')
    E('s_mul_i32 s49, s44, 168'); E('v_add_u32 v5, s49, v5')
    E('v_mul_u32_u24 v12, 37, v1'); E('v_lshrrev_b32 v12, 9, v12'); E('v_mul_u32_u24 v13, 14, v12'); E('v_sub_u32 v13, v1, v13')
    E('s_lshl_b32 s49, s46, 2'); E('v_add_u32 v12, s49, v12'); E('v_mul_u32_u24 v6, 3584, v12'); E('v_lshl_add_u32 v6, v13, 4, v6')
    E('s_mul_i32 s49, s44, 224'); E('v_add_u32 v6, s49, v6')
    E('v_and_b32 v12, 15, v1'); E('v_lshrrev_b32 v13, 2, v12'); E('v_lshl_add_u32 v13, v2, 3, v13')
    E('v_and_b32 v12, 3, v12'); E('v_lshlrev_b32 v12, 3, v12'); E('v_bfe_u32 v14, v1, 4, 1')
    E('v_mul_u32_u24 v7, 192, v13'); E('v_add_u32 v7, v7, v12'); E('v_lshl_add_u32 v7, v14, 5, v7')
    E('v_mul_u32_u24 v8, 224, v13'); E('v_add_u32 v8, v8, v12'); E('v_mul_u32_u24 v14, %d, v14' % UPOFF); E('v_add_u32 v8, v8, v14')
    E('s_lshl_b32 s49, s45, 7'); E('s_lshl_b32 s50, s47, 5'); E('s_add_u32 s49, s49, s50'); E('v_add_u32 v12, s49, v3')
    E('v_lshrrev_b32 v13, 4, v12'); E('v_lshlrev_b32 v240, 10, v13'); E('v_and_b32 v13, 15, v12'); E('v_lshl_add_u32 v240, v13, 4, v240')
    E('v_lshl_add_u32 v240, v2, 9, v240')
    E('s_lshl_b32 s49, s45, 2'); E('s_add_u32 s49, s49, s47'); E('s_mul_i32 s51, s49, 112'); E('s_mul_i32 s50, s44, 7'); E('s_add_u32 s51, s51, s50')
    E('s_lshl_b32 s51, s51, 10'); E('s_add_u32 s51, s51, %d' % H_OFF); E('v_lshlrev_b32 v242, 4, v1'); E('v_add_u32 v242, s51, v242')
    E('v_cmp_le_u32 s[62:63], 32, v1')
    E.fst(5)
    E('v_mov_b32 v%d, s58' % (T + 12))
    E.xmark = len(E.vm)
    E('s_mov_b32 s49, 0x3f803f80')
    for rho in range(2):
        A = T + rho * 4
        for t in range(7):
            E.vwait(('x', rho * 7 + t))
            for i in range(4):
                d = XR + (rho * 7 + t) * 4 + i
                first = (t == 0 and i < 2)
                E('v_dot2_f32_bf16 v%d, v%d, s49, %s' % (A + (i & 1), d, '0' if first else 'v%d' % (A + (i & 1))))
                E('v_dot2_f32_bf16 v%d, v%d, v%d, %s' % (A + 2 + (i & 1), d, d, '0' if first else 'v%d' % (A + 2 + (i & 1))))
    for rho in range(2):
        A = T + rho * 4
        E('v_add_f32 v%d, v%d, v%d' % (A, A, A + 1)); E('v_add_f32 v%d, v%d, v%d' % (A + 2, A + 2, A + 3))
    for pat in ('quad_perm:[1,0,3,2]', 'quad_perm:[2,3,0,1]', 'row_half_mirror'):
        for rho in range(2):
            for q in (0, 2):
                r = T + rho * 4 + q
                E('v_add_f32_dpp v%d, v%d, v%d %s row_mask:0xf bank_mask:0xf' % (r, r, r, pat))
    if WARM:
        E('v_mul_u32_u24 v16, 43, v1'); E('v_lshrrev_b32 v16, 7, v16')
        E('v_mul_u32_u24 v17, 3, v16'); E('v_sub_u32 v17, v1, v17')
        E('s_mul_i32 s49, s46, 7'); E('v_add_u32 v16, s49, v16'); E('v_lshlrev_b32 v16, 3, v16'); E('s_and_b32 s49, s45, 7'); E('v_add_u32 v16, s49, v16')
        E('v_lshlrev_b32 v17, 7, v17')
        E('v_min_u32 v18, 0xb8, v17'); E('v_mul_u32_u24 v19, 2688, v16'); E('v_add_u32 v18, v18, v19'); E('s_mul_i32 s49, s44, 168'); E('v_add_u32 v18, s49, v18')
        E('v_min_u32 v17, 0xd8, v17'); E('v_mul_u32_u24 v19, 3584, v16'); E('v_add_u32 v17, v17, v19'); E('s_mul_i32 s49, s44, 224'); E('v_add_u32 v17, s49, v17')
        E('s_mov_b64 exec, 0x1fffff')
        E('buffer_load_dword v244, v18, s[%d:%d], 0 offen' % (SWQ, SWQ + 3))
        E('buffer_load_dword v245, v17, s[%d:%d], 0 offen' % (SWG, SWG + 3))
        E('buffer_load_dword v246, v17, s[%d:%d], 0 offen' % (SWU, SWU + 3))
        E('s_mov_b64 exec, -1')
    E.fst(2)
    E('s_mov_b32 s49, 0x%x' % f32bits(1.0 / 448))
    for rho in range(2):
        A = T + rho * 4; nm = 10 + 2 * rho; rr = 11 + 2 * rho
        E('v_mul_f32 v%d, s49, v%d' % (A, A)); E('v_mul_f32 v%d, s49, v%d' % (A + 2, A + 2))
        E('v_fma_f32 v%d, -v%d, v%d, v%d' % (A + 2, A, A, A + 2)); E('v_max_f32 v%d, 0, v%d' % (A + 2, A + 2))
        E('v_cvt_pk_bf16_f32 v%d, v%d, v%d' % (A + 1, A, A + 2))
        E('v_lshlrev_b32 v%d, 16, v%d' % (A, A + 1)); E('v_and_b32 v%d, s58, v%d' % (A + 2, A + 1))
        E('v_xor_b32 v%d, 0x80000000, v%d' % (nm, A))
        E('v_add_f32 v%d, 0x%x, v%d' % (A + 2, f32bits(1e-5), A + 2))
        E('v_cvt_pk_bf16_f32 v%d, v%d, v%d' % (A + 2, A + 2, A + 2)); E('v_and_b32 v%d, s58, v%d' % (A + 2, A + 2))
        E('v_sqrt_f32 v%d, v%d' % (A + 2, A + 2))
        E('v_cvt_pk_bf16_f32 v%d, v%d, v%d' % (A + 2, A + 2, A + 2)); E('v_and_b32 v%d, s58, v%d' % (A + 2, A + 2))
        E('v_rcp_f32 v%d, v%d' % (rr, A + 2))
        E('v_fma_f32 v%d, -v%d, v%d, 2.0' % (A + 3, A + 2, rr)); E('v_mul_f32 v%d, v%d, v%d' % (rr, rr, A + 3))
    E('s_lshr_b32 s49, s46, 1'); E('s_mul_i32 s49, s49, 28672'); E('s_and_b32 s50, s46, 1'); E('s_lshl_b32 s50, s50, 4')
    E('v_lshrrev_b32 v14, 3, v1'); E('v_add_u32 v14, s50, v14'); E('v_and_b32 v15, 7, v1'); E('v_xor_b32 v14, v14, v15')
    E('v_lshlrev_b32 v14, 4, v14')
    E('v_lshrrev_b32 v9, 1, v15'); E('v_lshl_add_u32 v14, v9, 10, v14'); E('v_and_b32 v9, 1, v15'); E('v_lshl_add_u32 v14, v9, 9, v14')
    E('v_add_u32 v14, s49, v14')
    for rho in range(2):
        for t in range(7):
            x = XR + (rho * 7 + t) * 4
            if rho * 7 + t in (0, 3, 6): dma_stage(E, (rho * 7 + t) // 3)
            for o in norm_ops(x, 10 + 2 * rho, 11 + 2 * rho): E(o)
            E.lds('ds_write_b128 v14, v[%d:%d] offset:%d' % (x, x + 3, t * 4096 + rho * 128), 'xw')
    E.fst(3)
    E('s_mul_i32 s49, s47, 28672')
    for q in range(4):
        E('v_xor_b32 v%d, %d, v3' % (10 + q, 2 * q)); E('v_xor_b32 v%d, v%d, v2' % (10 + q, 10 + q)); E('v_lshlrev_b32 v%d, 4, v%d' % (10 + q, 10 + q))
        E('v_lshl_add_u32 v%d, v2, 9, v%d' % (10 + q, 10 + q)); E('v_add_u32 v%d, s49, v%d' % (10 + q, 10 + q))
    E('s_waitcnt lgkmcnt(0)'); E('s_barrier')
    for s_ in range(28):
        E.lds('ds_read_b128 v[%d:%d], v%d offset:%d' % (X(s_), X(s_) + 3, 10 + (s_ & 3), s_ * 1024), 'xr')
    E('s_waitcnt lgkmcnt(0)'); E('s_barrier')
    for g in range(3, 5): dma_stage(E, g)
    E.next_dma = 5
    E('s_mul_i32 s65, s47, 1536'); E('s_mul_i32 s49, s48, %d' % (32 * 2688)); E('v_subrev_u32 v238, s49, v5')
    E.fst(4)
    if os.environ.get('RT'): E('s_memrealtime s[76:77]'); E('s_waitcnt lgkmcnt(0)')

QF = 244
def kv_prefetch_addr(E):
    E('v_lshlrev_b32 v243, 4, v1')
    E('v_bfe_u32 v12, v1, 4, 1'); E('v_lshlrev_b32 v12, 7, v12'); E('v_xor_b32 v241, v243, v12')

def kv_prefetch(E):
    E('s_lshl_b32 s49, s44, 17'); E('s_lshl_b32 s50, s45, 3'); E('s_mul_i32 s51, s46, 3'); E('s_add_u32 s50, s50, s51')
    E('s_mul_i32 s51, s46, 3072')
    for n in range(3):
        E('s_add_i32 s61, s50, %d' % (n - 16)); E('s_max_i32 s61, s61, 0'); E('s_lshl_b32 s61, s61, 10'); E('s_add_u32 s61, s61, s49')
        E('s_add_u32 s92, s61, %d' % (16 << 17)); E('s_add_u32 m0, s51, %d' % (KL + n * 1024))
        E.vmem('buffer_load_dwordx4 v243, s[%d:%d], s92 offen%s lds' % (SWS, SWS + 3, SC), 'kv')
        E('s_add_u32 s92, s61, %d' % (32 << 17)); E('s_add_u32 m0, s51, %d' % (VL + n * 1024))
        E.vmem('buffer_load_dwordx4 v241, s[%d:%d], s92 offen%s lds' % (SWS, SWS + 3, SC), 'kv')
    E('s_lshl_b32 s50, s45, 3'); E('s_add_u32 s50, s50, s46'); E('s_lshl_b32 s61, s50, 10'); E('s_add_u32 s61, s61, s49')
    E.vmem('buffer_load_dwordx4 v[%d:%d], v243, s[%d:%d], s61 offen%s' % (QF, QF + 3, SWS, SWS + 3, SC), 'kv')

def kv_poll_issue(E):
    l = E.newlabel('kvp')
    E('s_cmp_lg_u32 s46, 0'); E('s_cbranch_scc1 %s' % l)
    E('v_add_u32 v12, 1, v1'); E('v_lshrrev_b32 v13, 1, v12')
    E('v_subrev_u32 v13, 1, v13'); E('v_max_i32 v13, 0, v13')
    E('v_and_b32 v14, 1, v1'); E('v_sub_u32 v14, 2, v14')
    E('v_cmp_eq_u32 vcc, 0, v1'); E('v_cndmask_b32 v14, v14, 0, vcc')
    E('v_lshlrev_b32 v14, 4, v14'); E('v_add_u32 v14, s44, v14')
    E('v_mul_u32_u24 v14, 43, v14'); E('v_lshrrev_b32 v14, 7, v14')
    E('v_sub_u32 v13, s45, v13'); E('v_max_i32 v13, 0, v13')
    E('v_lshl_add_u32 v13, v13, 4, v14'); E('v_lshlrev_b32 v255, 3, v13'); E('v_add_u32 v255, %d, v255' % FLAG_OFF)
    E('s_mov_b64 exec, 0x7f')
    E('buffer_load_dwordx2 v[252:253], v255, s[%d:%d], 0 offen sc1' % (SFL, SFL + 3))
    E('s_mov_b64 exec, -1')
    E.lines.append(l + ':')
def kv_poll_check(E, nvm):
    l = E.newlabel('kvc')
    E('s_cmp_lg_u32 s46, 0'); E('s_cbranch_scc1 %s' % l)
    E('s_waitcnt vmcnt(%d)' % nvm)
    E('s_mov_b64 exec, 0x7f')
    E('v_cmp_ne_u64 vcc, s[90:91], v[252:253]')
    E('s_mov_b64 exec, -1')
    E('s_cmp_eq_u64 vcc, 0'); E('s_cbranch_scc1 %s' % l)
    poll(E, 7)
    E.lines.append(l + ':')

def stage1_path(E, ch):
    steps = [(1, s) for s in range(28)] + [(2, s) for s in range(28)]
    def stage(st): return st[1] >> 2 if st[0] == 1 else 7 + (st[1] >> 1)
    def tiles(st):
        if st[0] == 1: return [0, 1] if ch == 0 else [2]
        return [0, 1, 2] if ch == 0 else [3, 4, 5, 6]
    def wf(buf, ti): return WF + buf * 16 + ti * 4
    def setaddr(st): E('v_add_u32 v9, %d, v%d' % (slot_addr(stage(st)), 7 if st[0] == 1 else 8))
    def read(st, ti, t, buf):
        if st[0] == 1: off = (st[1] & 3) * 16 * 192 + t * 56; d2 = 768
        else: off = (st[1] & 1) * 3584 + t * 32; d2 = 896
        r = wf(buf, ti)
        E.lds('ds_read_b64_tr_b16 v[%d:%d], v9 offset:%d' % (r, r + 1, off), ('w', st, t))
        E.lds('ds_read_b64_tr_b16 v[%d:%d], v9 offset:%d' % (r + 2, r + 3, off + d2), ('w', st, t))
    E.deferred = None; E.defer_skip = 0
    E.vwait(('st', 0)); E('s_barrier')
    setaddr(steps[0])
    for ti, t in enumerate(tiles(steps[0])): read(steps[0], ti, t, 0)
    for idx, st in enumerate(steps):
        buf = idx & 1
        nxt = steps[idx + 1] if idx + 1 < len(steps) else None
        tl = tiles(st)
        for ti, t in enumerate(tl):
            E.lwait(('w', st, t))
            a = ACC + 16 * ti
            c = ('v[%d:%d]' % (a, a + 15)) if st[1] > 0 else '0'
            w = wf(buf, ti); x = X(st[1])
            E('v_mfma_f32_32x32x16_bf16 v[%d:%d], v[%d:%d], v[%d:%d], %s' % (a, a + 15, w, w + 3, x, x + 3, c))
            if ti == len(tl) - 1 and getattr(E, 'deferred', None) and (nxt is None or stage(nxt) == stage(st)) and E.defer_skip == 0:
                for gg in E.deferred: dma_stage(E, gg)
                E.deferred = None
            if ti == 0 and nxt is not None and stage(nxt) != stage(st):
                ng = stage(nxt); g = stage(st)
                has_bar = (ng <= 7) or (ng & 1) or not SUPER
                if has_bar:
                    if ng == 9: E.vwait('stq')
                    if ng == 7: nonce_finish(E)
                    if ng == 17: kv_poll_check(E, sum(1 for t in E.vm[E.kvp_mark:] if not (isinstance(t, tuple) and t[0] == 'phantom')))
                    last_need = ng + 1 if (SUPER and ng >= 7) else ng
                    E.vwait(('st', last_need)); E('s_barrier')
                    if ng == 9: publish(E, 1)
                    lim = min(g + 9 if g >= 1 else 9, 20)
                    pend = []
                    for _ in range(3 if SUPER else 2):
                        if E.next_dma <= lim: pend.append(E.next_dma); E.next_dma += 1
                    if SOLO:
                        for gg in pend: dma_stage(E, gg, 'solo' if ((gg < 7) == (ch == 1)) else 'skip')
                    elif ch == 0 or not STAGGER:
                        for gg in pend: dma_stage(E, gg)
                    else:
                        E.deferred = pend
                    if ng == 17: kv_prefetch(E)
                if ng == 13:
                    kv_poll_issue(E); E.kvp_mark = len(E.vm)
                if ng == 16: kv_prefetch_addr(E)
                setaddr(nxt)
            if nxt is not None:
                ntl = tiles(nxt)
                if ti < len(ntl): read(nxt, ti, ntl[ti], buf ^ 1)
                if ti == len(tl) - 1:
                    for tj in range(len(tl), len(ntl)): read(nxt, tj, ntl[tj], buf ^ 1)
        if st == (1, 27):
            epilogue_qkv(E, ch)
    E.fst(6)
    epilogue_h(E, ch)

def epilogue_qkv(E, ch):
    P = T
    for ti, t in enumerate([0, 1] if ch == 0 else [2]):
        a = ACC + 16 * ti
        E('s_mul_i32 s49, s44, 3'); E('s_add_u32 s49, s49, %d' % t); E('s_lshl_b32 s50, s49, 17')
        E('s_cmp_ge_u32 s49, 32'); E('s_cselect_b32 s51, 0x3f803f80, 0'); E('v_mov_b32 v12, s51')
        for i in range(8):
            E('v_cvt_pk_bf16_f32 v%d, v%d, v%d' % (P + i, a + 2 * i, a + 2 * i + 1))
        E('v_cndmask_b32 v%d, v%d, v12, s[62:63]' % (P + 6, P + 6))
        E('v_cndmask_b32 v%d, v%d, v12, s[62:63]' % (P + 7, P + 7))
        E.vmem('buffer_store_dwordx4 v[%d:%d], v240, s[%d:%d], s50 offen%s' % (P, P + 3, SWS, SWS + 3, SC), 'stq')
        E.vmem('buffer_store_dwordx4 v[%d:%d], v240, s[%d:%d], s50 offen offset:256%s' % (P + 4, P + 7, SWS, SWS + 3, SC), 'stq')
        P = T + 8

def epilogue_h(E, ch):
    E('v_mov_b32 v15, s58')
    tl = [0, 1, 2] if ch == 0 else [3, 4, 5, 6]
    for ti, t in enumerate(tl):
        a = ACC + 16 * ti
        G = T; U = T + 4; H = WF + 4 * ti
        for i in range(4):
            E('v_cvt_pk_bf16_f32 v%d, v%d, v%d' % (G + i, a + 2 * i, a + 2 * i + 1))
            E('v_cvt_pk_bf16_f32 v%d, v%d, v%d' % (U + i, a + 8 + 2 * i, a + 8 + 2 * i + 1))
        for i in range(4):
            b = a + 4 * i
            E('v_lshlrev_b32 v%d, 16, v%d' % (b + 0, G + i)); E('v_and_b32 v%d, v15, v%d' % (b + 1, G + i))
            E('v_lshlrev_b32 v%d, 16, v%d' % (b + 2, U + i)); E('v_and_b32 v%d, v15, v%d' % (b + 3, U + i))
        for i in range(4):
            b = a + 4 * i
            E('v_mul_f32 v%d, v%d, v%d' % (b + 0, b + 0, b + 2)); E('v_mul_f32 v%d, v%d, v%d' % (b + 1, b + 1, b + 3))
        for i in range(4):
            b = a + 4 * i
            E('v_cvt_pk_bf16_f32 v%d, v%d, v%d' % (H + i, b + 0, b + 1))
        E('s_mov_b32 s50, %d' % (t * 1024))
        E.vmem('buffer_store_dwordx4 v[%d:%d], v242, s[%d:%d], s50 offen%s' % (H, H + 3, SWS, SWS + 3, SC), 'sth')

S0 = 32; PB = 104; KF = 144; VF = 160; OA = 176; BI = 184; NEG = 200
def stage2(E):
    E('v_and_b32 v3, 15, v1'); E('v_lshrrev_b32 v4, 4, v1')
    E('s_and_b32 s52, s46, 1'); E('s_lshl_b32 s52, s52, 4'); E('s_add_u32 s52, s52, 256')
    E('v_add_u32 v5, s52, v3'); E('v_lshlrev_b32 v6, 2, v4'); E('v_sub_u32 v5, v5, v6')
    E('s_mov_b32 s56, 0xf149f2ca'); E('v_mov_b32 v7, s56')
    for n in range(4): E('v_mov_b32 v%d, s56' % (NEG + n))
    E('s_movk_i32 s57, 256')
    for bi, tp in enumerate([0, 1, 16, 17]):
        for i in range(4):
            E('v_subrev_u32 v6, %d, v5' % (16 * tp + i)); E('v_cmp_gt_u32 vcc, s57, v6'); E('v_cndmask_b32 v%d, v7, 0, vcc' % (BI + 4 * bi + i))
    E('s_lshl_b32 s52, s45, 3'); E('s_sub_i32 s58, 16, s52'); E('s_and_b32 s52, s46, 6'); E('s_sub_i32 s58, s58, s52')
    E('s_lshr_b32 s52, s46, 1'); E('s_lshl_b32 s52, s52, 11')
    E('v_lshlrev_b32 v2, 4, v1'); E('v_add_u32 v8, s52, v2'); E('v_add_u32 v8, %d, v8' % KL)
    E('v_and_b32 v12, 15, v1'); E('v_lshrrev_b32 v13, 2, v12'); E('v_lshl_add_u32 v13, v4, 2, v13')
    E('v_bfe_u32 v14, v1, 1, 1'); E('v_lshlrev_b32 v15, 3, v14'); E('v_xor_b32 v13, v13, v15')
    E('v_lshlrev_b32 v9, 4, v13'); E('v_lshl_add_u32 v9, v14, 8, v9'); E('v_and_b32 v14, 1, v1'); E('v_lshl_add_u32 v9, v14, 3, v9')
    E('v_add_u32 v9, s52, v9')
    E('s_lshl_b32 s50, s45, 3'); E('s_add_u32 s50, s50, s46'); E('s_lshl_b32 s52, s50, 4'); E('s_add_u32 s52, s52, s44'); E('s_lshl_b32 s52, s52, 10'); E('s_add_u32 s55, s52, %d' % O_OFF)
    E.vwait('kv'); E('s_barrier')
    E.fst(7)
    labs = 'L_a_slow'; labj = 'L_a_join'
    E('s_cmp_gt_i32 s58, 0'); E('s_cbranch_scc1 %s' % labs)
    E.flush(0)
    lg0 = list(E.lg); vm0 = list(E.vm)
    a_scores(E, False)
    E('s_branch %s' % labj)
    E.label(labs)
    E.lg = list(lg0); E.vm = list(vm0)
    a_scores(E, True)
    E.label(labj)
    E.flush(8)
    E.vwait('sth'); arrive(E, 2)
    stage3_setup(E)
    stage3_w_prefetch(E)
    a_rest(E)

def a_scores(E, slow):
    bi_of = {0: 0, 1: 1, 16: 2, 17: 3}
    for tp in range(3):
        E.lds('ds_read_b128 v[%d:%d], v8 offset:%d' % (KF + 4 * (tp & 3), KF + 4 * (tp & 3) + 3, tp * 1024), ('k', tp))
    for tp in range(18):
        if tp + 3 < 18:
            n = tp + 3
            E.lds('ds_read_b128 v[%d:%d], v8 offset:%d' % (KF + 4 * (n & 3), KF + 4 * (n & 3) + 3, n * 1024), ('k', n))
        E.lwait(('k', tp))
        k = KF + 4 * (tp & 3); s = S0 + 4 * tp
        c = 'v[%d:%d]' % (BI + 4 * bi_of[tp], BI + 4 * bi_of[tp] + 3) if tp in bi_of else '0'
        if slow:
            l1 = E.newlabel('sl'); l2 = E.newlabel('sl')
            E('s_cmp_gt_i32 s58, %d' % tp); E('s_cbranch_scc1 %s' % l1)
            E('v_mfma_f32_16x16x32_bf16 v[%d:%d], v[%d:%d], v[%d:%d], %s' % (s, s + 3, k, k + 3, QF, QF + 3, c))
            E('s_branch %s' % l2)
            E.lines.append(l1 + ':')
            E('v_mfma_f32_16x16x32_bf16 v[%d:%d], v[%d:%d], v[%d:%d], v[%d:%d]' % (s, s + 3, k, k + 3, QF, QF + 3, NEG, NEG + 3))
            E.lines.append(l2 + ':')
        else:
            E('v_mfma_f32_16x16x32_bf16 v[%d:%d], v[%d:%d], v[%d:%d], %s' % (s, s + 3, k, k + 3, QF, QF + 3, c))

def a_vread(E, b):
    for mt in range(2):
        vf = VF + 8 * (b & 1) + 4 * mt
        for r in range(2):
            E.lds('ds_read_b64_tr_b16 v[%d:%d], v9 offset:%d' % (vf + 2 * r, vf + 2 * r + 1, VL + (2 * b + r) * 1024 + mt * 512), ('v', b, mt))

def a_rest(E):
    a_vread(E, 0)
    n = 72
    E('v_max3_f32 v12, v%d, v%d, v%d' % (S0, S0 + 1, S0 + 2)); E('v_max3_f32 v13, v%d, v%d, v%d' % (S0 + 3, S0 + 4, S0 + 5))
    i = 6; tog = 0
    while i + 1 < n:
        r = 12 + tog
        E('v_max3_f32 v%d, v%d, v%d, v%d' % (r, r, S0 + i, S0 + i + 1)); i += 2; tog ^= 1
    E('v_max_f32 v12, v12, v13')
    E('v_mov_b32 v13, v12'); E('v_permlane16_swap_b32 v12, v13'); E('v_max_f32 v12, v12, v13')
    E('v_mov_b32 v13, v12'); E('v_permlane32_swap_b32 v12, v13'); E('v_max_f32 v12, v12, v13')
    c = (28 ** -0.5) * math.log2(math.e)
    E('v_mov_b32 v15, 0x%x' % f32bits(c)); E('v_mul_f32 v12, v15, v12')
    for b in range(9):
        for q in range(8):
            r = S0 + 8 * b + q
            E('v_fma_f32 v%d, v%d, v15, -v12' % (r, r))
        for q in range(8):
            r = S0 + 8 * b + q
            E('v_exp_f32 v%d, v%d' % (r, r))
        for q in range(4):
            r = S0 + 8 * b + 2 * q
            E('v_cvt_pk_bf16_f32 v%d, v%d, v%d' % (PB + 4 * b + q, r, r + 1))
        if b + 1 < 9: a_vread(E, b + 1)
        for mt in range(2):
            E.lwait(('v', b, mt))
            vf = VF + 8 * (b & 1) + 4 * mt; o = OA + 4 * mt; p = PB + 4 * b
            cc = 'v[%d:%d]' % (o, o + 3) if b > 0 else '0'
            E('v_mfma_f32_16x16x32_bf16 v[%d:%d], v[%d:%d], v[%d:%d], %s' % (o, o + 3, vf, vf + 3, p, p + 3, cc))
    E('v_and_b32 v13, 15, v1'); E('v_add_u32 v13, 48, v13'); E('v_lshlrev_b32 v13, 2, v13')
    E.lds('ds_bpermute_b32 v14, v13, v%d' % (OA + 4), 'bp')
    E('v_cmp_le_u32 vcc, 48, v1')
    E.lwait('bp')
    E('v_rcp_f32 v14, v14')
    for i in range(8): E('v_mul_f32 v%d, v%d, v14' % (OA + i, OA + i))
    for i in range(4): E('v_cndmask_b32 v%d, v%d, 0, vcc' % (OA + 4 + i, OA + 4 + i))
    for q in range(4): E('v_cvt_pk_bf16_f32 v%d, v%d, v%d' % (PB + q, OA + 2 * q, OA + 2 * q + 1))
    E.vmem('buffer_store_dwordx4 v[%d:%d], v2, s[%d:%d], s55 offen%s' % (PB, PB + 3, SWS, SWS + 3, SC), 'sto')

SWD, SWO, SX3, SOUT = 24, 28, 36, 32
ACC3 = 16; HB = 80; DEPTH = 3; WR = 128; NREG = 6; WF3 = 224; RING = 4096; VWD = 240
def stage3_setup(E):
    E('s_and_b32 s61, s2, 7'); E('s_lshl_b32 s61, s61, 2'); E('s_lshr_b32 s49, s2, 3'); E('s_and_b32 s49, s49, 3'); E('s_add_u32 s61, s61, s49')
    E('s_lshr_b32 s62, s2, 5')
    srd(E, SWD, 16, 1792 * 896); srd(E, SWO, 8, 448 * 896); srd(E, SX3, 4, 2048 * 896); srd(E, SOUT, 18, 2048 * 896)
    E('v_lshrrev_b32 v12, 3, v1'); E('v_mul_u32_u24 v240, 896, v12'); E('v_bfe_u32 v13, v1, 4, 1'); E('v_lshlrev_b32 v13, 2, v13')
    E('v_and_b32 v12, 7, v1'); E('v_xor_b32 v12, v12, v13'); E('v_lshl_add_u32 v240, v12, 4, v240')
    E('s_lshl_b32 s49, s62, 7'); E('v_add_u32 v240, s49, v240')
    E('s_mul_i32 s64, s46, %d' % (DEPTH * RING)); E('s_add_u32 s64, s64, %d' % RING3)
    E('s_mul_i32 s63, s46, 10'); E('s_mul_i32 s49, s46, 9'); E('s_add_u32 s49, s49, 2'); E('s_cmp_ge_u32 s46, 2'); E('s_cselect_b32 s63, s49, s63')
    E('s_sub_u32 s49, s46, 6'); E('s_lshl_b32 s49, s49, 3'); E('s_cmp_ge_u32 s46, 6'); E('s_cselect_b32 s63, s49, s63')
    E('s_mul_i32 s65, s63, %d' % (32 * 896)); E('s_mul_i32 s49, s63, %d' % (28 * 896)); E('s_cselect_b32 s65, s49, s65')

def w_issue(E, kind, u):
    slot = u % DEPTH
    wsrd = SWD if kind == 'D' else SWO; wstep = (32 if kind == 'D' else 28) * 896
    for qd in range(4):
        E('s_add_u32 m0, s64, %d' % (slot * RING + qd * 1024))
        E('s_add_u32 s52, s65, %d' % (u * wstep + qd * 8 * 896))
        E.vmem('buffer_load_dwordx4 v240, s[%d:%d], s52 offen lds' % (wsrd, wsrd + 3), ('u', u))

def stage3_w_prefetch(E):
    l = E.newlabel('s3p'); le = E.newlabel('s3pe')
    E('s_cmp_ge_u32 s2, 224'); E('s_cbranch_scc1 %s' % l)
    E('s_cmp_ge_u32 s46, 6'); E('s_cbranch_scc1 %s' % le)
    vm0 = list(E.vm)
    for u in range(DEPTH): w_issue(E, 'D', u)
    E('s_branch %s' % l)
    E.lines.append(le + ':')
    E.vm = vm0
    for u in range(DEPTH): w_issue(E, 'E', u)
    E.lines.append(l + ':')
    E.vm = vm0
    E.flush(1)

def stage3(E):
    E('v_lshrrev_b32 v2, 5, v1'); E('v_lshlrev_b32 v3, 4, v1')
    E('v_and_b32 v12, 15, v1'); E('v_lshrrev_b32 v13, 2, v12'); E('v_lshl_add_u32 v13, v2, 2, v13'); E('v_lshlrev_b32 v5, 7, v13')
    E('v_bfe_u32 v13, v1, 4, 1'); E('v_lshlrev_b32 v13, 1, v13'); E('v_bfe_u32 v14, v1, 1, 1'); E('v_add_u32 v13, v13, v14')
    E('v_bfe_u32 v14, v1, 3, 1'); E('v_lshlrev_b32 v14, 2, v14'); E('v_xor_b32 v13, v13, v14'); E('v_lshl_add_u32 v5, v13, 4, v5')
    E('v_and_b32 v13, 1, v1'); E('v_lshl_add_u32 v5, v13, 3, v5')
    E('v_bfe_u32 v12, v1, 4, 1'); E('v_lshlrev_b32 v6, 14, v12'); E('v_lshl_add_u32 v6, v2, 8, v6'); E('v_and_b32 v12, 15, v1'); E('v_lshl_add_u32 v6, v12, 4, v6')
    E('v_add_u32 v5, s64, v5')
    lx = E.newlabel('s3x')
    E('s_cmp_lt_u32 s2, 224'); E('s_cbranch_scc1 %s' % lx)
    E('s_waitcnt vmcnt(0)'); arrive(E, 3); E('s_branch L_exit')
    E.lines.append(lx + ':')
    lE = 'L_s3_E'; l9 = 'L_s3_D9'; lj = 'L_s3_join'
    E('s_cmp_ge_u32 s46, 6'); E('s_cbranch_scc1 %s' % lE)
    E('v_xor_b32 v15, 64, v5')
    E('s_cmp_ge_u32 s46, 2'); E('s_cbranch_scc1 %s' % l9)
    lg0 = list(E.lg)
    vm0 = [('w', u) for u in range(DEPTH) for _ in range(4)] + ['sto']
    E.vm = list(vm0)
    E.flush(0)
    s3_stream(E, 'D', 10); E('s_branch %s' % lj)
    E.label(l9); E.vm, E.lg = list(vm0), list(lg0)
    s3_stream(E, 'D', 9); E('s_branch %s' % lj)
    E.label(lE); E.vm, E.lg = list(vm0), list(lg0)
    E('v_lshl_add_u32 v5, v2, 9, v5'); E('v_xor_b32 v15, 64, v5')
    s3_stream(E, 'E', 8)
    E.label(lj)
    E.flush(12)
    E.fst(10)
    s3_reduce(E)

def w3_issue(E, kind, u):
    slot = u % DEPTH
    wsrd = SWD if kind == 'D' else SWO; wstep = (32 if kind == 'D' else 28) * 896
    for qd in range(4):
        E('s_add_u32 m0, s64, %d' % (slot * RING + qd * 1024))
        E('s_add_u32 s52, s65, %d' % (u * wstep + qd * 8 * 896))
        E.vmem('buffer_load_dwordx4 v240, s[%d:%d], s52 offen lds' % (wsrd, wsrd + 3), ('w', u))

def w3_read(E, kind, u, dst):
    slot = u % DEPTH
    for e in range(2):
        for ct in range(2):
            w = dst + e * 8 + ct * 4
            o1 = e * 16 * 128; d2 = (8 if kind == 'D' else 4) * 128
            off = slot * RING + o1
            av = 5 if ct == 0 else 15
            E.lds('ds_read_b64_tr_b16 v[%d:%d], v%d offset:%d' % (w, w + 1, av, off), ('wr', u, e, ct))
            E.lds('ds_read_b64_tr_b16 v[%d:%d], v%d offset:%d' % (w + 2, w + 3, av, off + d2), ('wr', u, e, ct))

def s3_stream(E, kind, nu):
    for u in range(NREG):
        E.vwait(('w', u))
        w3_read(E, kind, u, WR + 16 * u)
        if u == 0:
            E.vwait('sto'); arrive(E, 3)
        E('s_waitcnt lgkmcnt(0)')
        if u + DEPTH < nu and u + DEPTH < NREG + DEPTH: w3_issue(E, kind, u + DEPTH)
    E.fst(1)
    load_nonce(E)
    E('s_lshr_b32 s49, s61, 1'); E('s_lshl_b32 s49, s49, 7'); E('s_add_u32 s49, s49, %d' % (FLAG_OFF + (2048 if kind == 'D' else 4096)))
    if kind == 'D':
        E('s_lshl_b32 s50, s63, 5'); E('s_mul_i32 s51, s50, 9363'); E('s_lshr_b32 s51, s51, 20')
        E('s_add_u32 s50, s50, %d' % (nu * 32 - 1)); E('s_mul_i32 s50, s50, 9363'); E('s_lshr_b32 s50, s50, 20')
        E('v_add_u32 v255, s51, v1'); E('v_min_u32 v255, s50, v255')
        npl = 4
    else:
        E('v_add_u32 v255, s63, v1')
        npl = 8
    E('v_lshlrev_b32 v255, 3, v255'); E('v_add_u32 v255, s49, v255')
    poll(E, npl)
    E.vm.append('drained');
    E.fst(8)
    if kind == 'D':
        E('s_mul_i32 s51, s61, 224'); E('s_lshl_b32 s52, s63, 1'); E('s_add_u32 s51, s51, s52'); E('s_lshl_b32 s51, s51, 10'); E('s_add_u32 s51, s51, %d' % H_OFF)
    else:
        E('s_lshl_b32 s51, s61, 6'); E('s_add_u32 s51, s51, s63'); E('s_lshl_b32 s51, s51, 10'); E('s_add_u32 s51, s51, %d' % O_OFF)
    def issue_b(u):
        slot = u % DEPTH
        for e in range(2):
            for tt in range(2):
                r = HB + slot * 16 + (e * 2 + tt) * 4
                if kind == 'D':
                    E('s_add_u32 s52, s51, %d' % ((tt * 112 + 2 * u + e) * 1024))
                    E.vmem('buffer_load_dwordx4 v[%d:%d], v3, s[%d:%d], s52 offen%s' % (r, r + 3, SWS, SWS + 3, LDF), ('h', u))
                else:
                    E('s_add_u32 s52, s51, %d' % ((tt * 32 + u) * 1024 + e * 512))
                    E.vmem('buffer_load_dwordx4 v[%d:%d], v6, s[%d:%d], s52 offen%s' % (r, r + 3, SWS, SWS + 3, LDF), ('h', u))
    for u in range(min(DEPTH, nu)): issue_b(u)
    for u in range(nu):
        slot = u % DEPTH
        if u >= NREG:
            if ('w', u) in E.vm[E.vm.index('drained'):]: E.vwait(('w', u))
            w3_read(E, kind, u, WF3)
        E.vwait(('h', u))
        if u == 0: E.fst(9)
        for e in range(2):
            for ct in range(2):
                if u >= NREG: E.lwait(('wr', u, e, ct))
                w = (WR + 16 * u if u < NREG else WF3) + e * 8 + ct * 4
                for tt in range(2):
                    a = ACC3 + (ct * 2 + tt) * 16; b = HB + slot * 16 + (e * 2 + tt) * 4
                    c = 'v[%d:%d]' % (a, a + 15) if (u > 0 or e > 0) else '0'
                    E('v_mfma_f32_32x32x16_bf16 v[%d:%d], v[%d:%d], v[%d:%d], %s' % (a, a + 15, w, w + 3, b, b + 3, c))
        if u >= NREG and u + DEPTH < nu: w3_issue(E, kind, u + DEPTH)
        if u + DEPTH < nu: issue_b(u + DEPTH)

def s3_reduce(E):
    E('v_and_b32 v7, 31, v0'); E('v_bfe_u32 v8, v0, 5, 2'); E('v_bfe_u32 v9, v0, 7, 1'); E('v_lshrrev_b32 v10, 8, v0')
    E('s_lshl_b32 s49, s61, 6'); E('v_lshl_add_u32 v11, v10, 5, v7'); E('v_add_u32 v11, s49, v11'); E('v_mul_u32_u24 v11, 896, v11')
    E('v_lshlrev_b32 v12, 5, v9'); E('v_lshl_add_u32 v12, v8, 3, v12')
    E('s_lshl_b32 s49, s62, 7'); E('v_lshl_add_u32 v11, v12, 1, v11'); E('v_add_u32 v11, s49, v11')
    E.vmem('buffer_load_dwordx4 v[244:247], v11, s[%d:%d], 0 offen' % (SX3, SX3 + 3), 'x')
    E('s_barrier')
    E('s_lshl_b32 s49, s46, 14'); E('v_add_u32 v13, s49, v3')
    for t in range(4):
        for a in range(4):
            r = ACC3 + t * 16 + a * 4
            E.lds('ds_write_b128 v13, v[%d:%d] offset:%d' % (r, r + 3, t * 4096 + a * 1024), 'pw')
    E('s_waitcnt lgkmcnt(0)'); E('s_barrier')
    E('v_lshlrev_b32 v13, 1, v9'); E('v_add_u32 v13, v13, v10'); E('v_lshl_add_u32 v13, v13, 2, v8'); E('v_lshlrev_b32 v13, 10, v13')
    E('v_lshl_add_u32 v13, v7, 4, v13'); E('v_add_u32 v14, 0x10000, v13')
    R0 = 64
    for w in range(8):
        for hh in range(2):
            r = R0 + (w * 2 + hh) * 4
            E.lds('ds_read_b128 v[%d:%d], v%d offset:%d' % (r, r + 3, 13 if w < 4 else 14, (w & 3) * 16384 + hh * 512), ('pr', w))
    F = 32; S = 40
    E.lwait(('pr', 1))
    for i in range(8): E('v_add_f32 v%d, v%d, v%d' % (F + i, R0 + i, R0 + 8 + i))
    for w in range(2, 6):
        E.lwait(('pr', w))
        for i in range(8): E('v_add_f32 v%d, v%d, v%d' % (F + i, F + i, R0 + w * 8 + i))
    E.lwait(('pr', 7))
    for i in range(8): E('v_add_f32 v%d, v%d, v%d' % (S + i, R0 + 48 + i, R0 + 56 + i))
    E('s_mov_b32 s58, 0xffff0000'); E('s_mov_b32 s59, 0x%x' % f32bits(-math.log2(math.e)))
    for i in range(4):
        E('v_cvt_pk_bf16_f32 v%d, v%d, v%d' % (48 + i, F + 2 * i, F + 2 * i + 1)); E('v_cvt_pk_bf16_f32 v%d, v%d, v%d' % (52 + i, S + 2 * i, S + 2 * i + 1))
    for i in range(4):
        E('v_lshlrev_b32 v%d, 16, v%d' % (F + 2 * i, 48 + i)); E('v_and_b32 v%d, s58, v%d' % (F + 2 * i + 1, 48 + i))
        E('v_lshlrev_b32 v%d, 16, v%d' % (S + 2 * i, 52 + i)); E('v_and_b32 v%d, s58, v%d' % (S + 2 * i + 1, 52 + i))
    for i in range(8): E('v_mul_f32 v%d, s59, v%d' % (48 + i, F + i))
    for i in range(8): E('v_exp_f32 v%d, v%d' % (48 + i, 48 + i))
    for i in range(8): E('v_add_f32 v%d, 1.0, v%d' % (48 + i, 48 + i))
    for i in range(8): E('v_rcp_f32 v%d, v%d' % (48 + i, 48 + i))
    for i in range(8): E('v_mul_f32 v%d, v%d, v%d' % (F + i, F + i, 48 + i))
    for i in range(4): E('v_cvt_pk_bf16_f32 v%d, v%d, v%d' % (48 + i, F + 2 * i, F + 2 * i + 1))
    for i in range(4):
        E('v_lshlrev_b32 v%d, 16, v%d' % (F + 2 * i, 48 + i)); E('v_and_b32 v%d, s58, v%d' % (F + 2 * i + 1, 48 + i))
    for i in range(8): E('v_mul_f32 v%d, v%d, v%d' % (F + i, F + i, S + i))
    for i in range(4): E('v_cvt_pk_bf16_f32 v%d, v%d, v%d' % (48 + i, F + 2 * i, F + 2 * i + 1))
    E.vwait('x')
    for i in range(4):
        E('v_lshlrev_b32 v%d, 16, v%d' % (F + 2 * i, 48 + i)); E('v_and_b32 v%d, s58, v%d' % (F + 2 * i + 1, 48 + i))
        E('v_lshlrev_b32 v%d, 16, v%d' % (S + 2 * i, 244 + i)); E('v_and_b32 v%d, s58, v%d' % (S + 2 * i + 1, 244 + i))
    for i in range(8): E('v_add_f32 v%d, v%d, v%d' % (F + i, F + i, S + i))
    for i in range(4): E('v_cvt_pk_bf16_f32 v%d, v%d, v%d' % (48 + i, F + 2 * i, F + 2 * i + 1))
    E.vmem('buffer_store_dwordx4 v[48:51], v11, s[%d:%d], 0 offen' % (SOUT, SOUT + 3), 'out')

def build(out):
    E = Emit(); E.kname = 'f'; E.stamps = False
    def fst(i):
        if STAMP:
            E('s_memtime s[%d:%d]' % (66 + 2 * i, 67 + 2 * i))
            E('s_waitcnt lgkmcnt(0)')
    E.fst = fst
    E.raw('.globl %s_kernel' % NAME); E.raw('.p2align 8'); E.raw('.type %s_kernel,@function' % NAME); E.raw('%s_kernel:' % NAME)
    E.lines.append('L_code_start:')
    E('s_cmp_ge_u32 s2, 256'); E('s_cbranch_scc1 L_exit')
    E('s_load_dwordx16 s[4:19], s[0:1], 0'); E('s_load_dwordx4 s[20:23], s[0:1], 64')
    E('v_mov_b32 v255, 0')
    E.fst(0)
    if os.environ.get('RT'): E('s_memrealtime s[70:71]'); E('s_waitcnt lgkmcnt(0)')
    stage1_prologue(E)
    E('s_cmp_lg_u32 s48, 0'); E('s_cbranch_scc1 L_s1_ch1')
    vm0, lg0, nd0 = list(E.vm), list(E.lg), E.next_dma
    E.flush(2)
    stage1_path(E, 0); vmA = list(E.vm)
    E('s_branch L_s1_join')
    E.label('L_s1_ch1'); E.vm, E.lg, E.next_dma = list(vm0), list(lg0), nd0
    E.flush(2)
    stage1_path(E, 1)
    E.label('L_s1_join')
    stage2(E)
    stage3(E)
    if STAMP:
        E('s_waitcnt vmcnt(0)')
        E.stamps = True
        E('s_memtime s[88:89]'); E('s_waitcnt lgkmcnt(0)')
        if os.environ.get('RT'): E('s_memrealtime s[72:73]'); E('s_waitcnt lgkmcnt(0)')
        E.dump_stamps()
    E.label('L_exit')
    E('s_endpgm')
    E.lines.append('.p2align 10'); E.lines.append('L_code_end:')
    s = HDR + '; @launch grid=(256,1,1) block=(512,1,1) lds=%d\n' % LDS_TOTAL
    s += '.amdgcn_target "amdgcn-amd-amdhsa--gfx950"\n.text\n' + E.text()
    s += '''.section .rodata,"a"
.p2align 6
.amdhsa_kernel %s_kernel
  .amdhsa_next_free_vgpr 256
  .amdhsa_next_free_sgpr 102
  .amdhsa_accum_offset 256
  .amdhsa_group_segment_fixed_size 0
  .amdhsa_kernarg_size 80
  .amdhsa_user_sgpr_count 2
  .amdhsa_user_sgpr_kernarg_segment_ptr 1
  .amdhsa_system_sgpr_workgroup_id_x 1
.end_amdhsa_kernel
''' % NAME
    open(out, 'w').write(s)
    print("nops inserted", E.nops_inserted, "bytes", len(s))
if __name__ == '__main__':
    build(sys.argv[1] if len(sys.argv) > 1 else 'cdna_kernels/%s.s' % NAME)
```

```python
import sys, os, math, struct
sys.path.insert(0, 'gen')
from asmlib import *
STAMP = os.environ.get('STAMP', '') != ''
HDR = open('recurrent_scan__sliding_block__glu_gated_bilinear__prompt.s.ref').read().split('; Override')[0]
NAME = 'recurrent_scan__sliding_block__glu_gated_bilinear__prompt'
SC = ' sc1'
LDF = os.environ.get('LDF', ' sc1')
SOLO = os.environ.get('SOLO', '0') == '1'
SUPER = os.environ.get('SUPER', '1') == '1'
STAGGER = os.environ.get('STAGGER', '1') == '1'
WARM = os.environ.get('WARM', '1') == '1'
CODEPF = os.environ.get('CODEPF', '1') == '1'
def f32bits(x): return struct.unpack('<I', struct.pack('<f', x))[0]

H_OFF = 6 << 20; O_OFF = 14 << 20; FLAG_OFF = 24 << 20; WS_USED = 16 << 20
SLOT = 14848; NSLOT = 10; UPOFF = 7168 + 128; XSTAGE = 114688
def slot_addr(g):
    i = g % NSLOT
    return XSTAGE + i * SLOT if i < 3 else (i - 3) * SLOT
K1_LDS = XSTAGE + 3 * SLOT
NONCE_LDS = K1_LDS
LDS_TOTAL = K1_LDS + 64
KL = XSTAGE + SLOT
VL = 0
RING3 = 24576
SX, SWQ, SWG, SWU, SWS = 24, 28, 32, 36, 40
SDBG, SFL = 84, 96
XB = 16; XR = 128; ACC = 128; WF = 192; T = 224
def X(s): return XB + 4 * s

def srd(E, d, p, nbytes):
    E('s_mov_b32 s%d, s%d' % (d, p)); E('s_and_b32 s%d, s%d, 0xffff' % (d + 1, p + 1))
    E('s_mov_b32 s%d, 0x%x' % (d + 2, nbytes)); E('s_mov_b32 s%d, 0x00020000' % (d + 3))

def nonce_issue(E):
    l = E.newlabel('non')
    E('s_cmp_lg_u32 s46, 0'); E('s_cbranch_scc1 %s' % l)
    E('s_memrealtime s[90:91]'); E('s_waitcnt lgkmcnt(0)')
    E('s_or_b32 s90, s90, 1')
    E('v_mov_b32 v248, s90'); E('v_mov_b32 v249, s91'); E('v_mov_b32 v250, 0'); E('v_mov_b32 v251, 0'); E('v_mov_b32 v252, 0')
    E('s_mov_b64 exec, 1')
    E('buffer_atomic_cmpswap_x2 v[248:251], v252, s[%d:%d], 0 offen sc0' % (SDBG, SDBG + 3))
    E('s_mov_b64 exec, -1')
    E.lines.append(l + ':')
def nonce_finish(E):
    l = E.newlabel('nonf')
    E('s_cmp_lg_u32 s46, 0'); E('s_cbranch_scc1 %s' % l)
    E('v_readfirstlane_b32 s92, v248'); E('v_readfirstlane_b32 s93, v249')
    E('s_nop 3')
    E('s_cmp_eq_u64 s[92:93], 0'); E('s_cselect_b32 s90, s90, s92'); E('s_cselect_b32 s91, s91, s93')
    E('v_mov_b32 v248, s90'); E('v_mov_b32 v249, s91'); E('v_mov_b32 v252, %d' % NONCE_LDS)
    E('ds_write_b64 v252, v[248:249]')
    E('v_mov_b32 v248, 0'); E('v_mov_b32 v249, 0')
    E('ds_write_b64 v252, v[248:249] offset:8')
    E('s_waitcnt lgkmcnt(0)')
    E.lines.append(l + ':')
def load_nonce(E):
    E('v_mov_b32 v252, %d' % NONCE_LDS); E('ds_read_b64 v[248:249], v252'); E('s_waitcnt lgkmcnt(0)')
    E('v_readfirstlane_b32 s90, v248'); E('v_readfirstlane_b32 s91, v249')
    E('s_nop 3')
def publish(E, level):
    l = E.newlabel('pub')
    E('s_cmp_lg_u32 s46, 0'); E('s_cbranch_scc1 %s' % l)
    E('s_lshl_b32 s92, s94, 3'); E('s_add_u32 s92, s92, %d' % (FLAG_OFF + (level - 1) * 2048))
    E('v_mov_b32 v248, s90'); E('v_mov_b32 v249, s91'); E('v_mov_b32 v255, s92')
    E('s_mov_b64 exec, 1')
    E('buffer_store_dwordx2 v[248:249], v255, s[%d:%d], 0 offen sc1' % (SFL, SFL + 3))
    E('s_mov_b64 exec, -1')
    E.lines.append(l + ':')
def arrive(E, level):
    l = E.newlabel('arr')
    E('v_mov_b32 v252, %d' % (NONCE_LDS + 8 + 4 * (level - 2))); E('v_mov_b32 v253, 1')
    E('s_mov_b64 exec, 1')
    E('ds_add_rtn_u32 v254, v252, v253')
    E('s_mov_b64 exec, -1')
    E('s_waitcnt lgkmcnt(0)')
    E('v_readfirstlane_b32 s92, v254')
    E('s_nop 3')
    E('s_cmp_lg_u32 s92, 7'); E('s_cbranch_scc1 %s' % l)
    load_nonce(E)
    E('s_lshl_b32 s92, s94, 3'); E('s_add_u32 s92, s92, %d' % (FLAG_OFF + (level - 1) * 2048))
    E('v_mov_b32 v248, s90'); E('v_mov_b32 v249, s91'); E('v_mov_b32 v255, s92')
    E('s_mov_b64 exec, 1')
    E('buffer_store_dwordx2 v[248:249], v255, s[%d:%d], 0 offen sc1' % (SFL, SFL + 3))
    E('s_mov_b64 exec, -1')
    E.lines.append(l + ':')
    E.flush(0)
def poll(E, nlanes):
    l = E.newlabel('poll'); d = E.newlabel('polld')
    E('s_mov_b32 s95, 0')
    E('s_mov_b64 exec, %d' % ((1 << nlanes) - 1))
    E.label(l)
    E('buffer_load_dwordx2 v[252:253], v255, s[%d:%d], 0 offen sc1' % (SFL, SFL + 3))
    E('s_waitcnt vmcnt(0)')
    E('v_cmp_ne_u64 vcc, s[90:91], v[252:253]')
    E('s_nop 1')
    E('s_cmp_eq_u64 vcc, 0'); E('s_cbranch_scc1 %s' % d)
    E('s_sleep 2')
    E('s_add_u32 s95, s95, 1'); E('s_cmp_lt_u32 s95, 0x40000'); E('s_cbranch_scc1 %s' % l)
    E.label(d)
    E('s_mov_b64 exec, -1')

def norm_ops(x, nm, rr):
    ops = []
    for i in range(4):
        ops.append('v_dot2_f32_bf16 v%d, v%d, s56, v%d' % (T + 2 * i, x + i, nm))
        ops.append('v_dot2_f32_bf16 v%d, v%d, s57, v%d' % (T + 2 * i + 1, x + i, nm))
    for i in range(4):
        ops.append('v_cvt_pk_bf16_f32 v%d, v%d, v%d' % (T + 8 + i, T + 2 * i, T + 2 * i + 1))
    for i in range(4):
        ops.append('v_lshlrev_b32 v%d, 16, v%d' % (T + 2 * i, T + 8 + i))
        ops.append('v_and_b32 v%d, v%d, v%d' % (T + 2 * i + 1, T + 12, T + 8 + i))
    for i in range(8):
        ops.append('v_mul_f32 v%d, v%d, v%d' % (T + i, T + i, rr))
    for i in range(4):
        ops.append('v_cvt_pk_bf16_f32 v%d, v%d, v%d' % (x + i, T + 2 * i, T + 2 * i + 1))
    return ops

def dma_stage(E, g, role=None):
    sb = slot_addr(g)
    if os.environ.get('NODMA') or role == 'skip':
        E.vm.append(('phantom', ('st', g))); return
    halves = (0,) if role is None else (0, 1)
    if g < 7:
        E('s_mov_b64 exec, s[52:53]')
        for hf in halves:
            for n in range(2):
                E('s_add_u32 m0, %s, %d' % ('s59' if role is None else 's65', sb + n * 768 + hf * 4 * 1536))
                E('s_mov_b32 s50, %d' % (g * 64 * 2688 + n * 4 * 2688 + hf * 32 * 2688))
                E.vmem('buffer_load_dwordx4 %s, s[%d:%d], s50 offen lds' % ('v5' if role is None else 'v238', SWQ, SWQ + 3), ('st', g))
        E('s_mov_b64 exec, -1')
    else:
        tau = g - 7
        E('s_mov_b64 exec, s[54:55]')
        for hf in halves:
            E('s_mov_b32 s50, %d' % (tau * 32 * 3584 + hf * 16 * 3584))
            E('s_add_u32 m0, %s, %d' % ('s60' if role is None else 's60', sb + hf * 4 * 896))
            E.vmem('buffer_load_dwordx4 v6, s[%d:%d], s50 offen lds' % (SWG, SWG + 3), ('st', g))
            E('s_add_u32 m0, s60, %d' % (sb + UPOFF + hf * 4 * 896))
            E.vmem('buffer_load_dwordx4 v6, s[%d:%d], s50 offen lds' % (SWU, SWU + 3), ('st', g))
        E('s_mov_b64 exec, -1')

def stage1_prologue(E):
    E('v_and_b32 v1, 63, v0'); E('v_lshrrev_b32 v12, 6, v0'); E('v_lshrrev_b32 v2, 5, v1'); E('v_and_b32 v3, 31, v1')
    E('v_readfirstlane_b32 s46, v12')
    E('s_and_b32 s49, s2, 7'); E('s_lshr_b32 s50, s2, 3'); E('s_and_b32 s44, s49, 3'); E('s_lshl_b32 s44, s44, 2'); E('s_and_b32 s51, s50, 3')
    E('s_add_u32 s44, s44, s51'); E('s_lshr_b32 s45, s49, 2'); E('s_lshl_b32 s45, s45, 3'); E('s_lshr_b32 s51, s50, 2'); E('s_add_u32 s45, s45, s51')
    E('s_lshl_b32 s94, s45, 4'); E('s_add_u32 s94, s94, s44')
    E('s_and_b32 s47, s46, 3'); E('s_lshr_b32 s48, s46, 2')
    E('s_lshl_b32 s49, s45, 7'); E('s_lshl_b32 s50, s46, 4'); E('s_add_u32 s49, s49, s50')
    E('v_lshrrev_b32 v12, 3, v1'); E('v_add_u32 v4, s49, v12'); E('v_mul_u32_u24 v4, 896, v4')
    E('v_and_b32 v13, 7, v1'); E('v_lshl_add_u32 v4, v13, 4, v4')
    E('v_add_u32 v9, %d, v4' % (8 * 896))
    E('s_waitcnt lgkmcnt(0)')
    srd(E, SX, 4, 2048 * 896)
    for rho in range(2):
        for t in range(7):
            r = XR + (rho * 7 + t) * 4
            E.vmem('buffer_load_dwordx4 v[%d:%d], v%d, s[%d:%d], 0 offen offset:%d' % (r, r + 3, 4 if rho == 0 else 9, SX, SX + 3, t * 128), ('x', rho * 7 + t))
    if CODEPF:
        lp = E.newlabel('cpf')
        E('s_lshr_b32 s49, s2, 3'); E('s_lshl_b32 s49, s49, 3'); E('s_add_u32 s49, s49, s46'); E('s_lshl_b32 s49, s49, 10')
        E('s_cmp_ge_u32 s49, L_code_end - L_code_start'); E('s_cbranch_scc1 %s' % lp)
        E('s_getpc_b64 s[50:51]')
        E.lines.append('L_pc_here:')
        E('s_sub_u32 s50, s50, L_pc_here - L_code_start'); E('s_subb_u32 s51, s51, 0')
        E('v_lshlrev_b32 v12, 4, v1'); E('v_add_u32 v12, s49, v12')
        E('global_load_dwordx4 v[244:247], v12, s[50:51]')
        E.lines.append(lp + ':')
    srd(E, SWQ, 6, 448 * 2688); srd(E, SWG, 12, 448 * 3584); srd(E, SWU, 14, 448 * 3584); srd(E, SWS, 22, WS_USED)
    srd(E, SDBG, 20, 256); srd(E, SFL, 22, 32 << 20)
    nonce_issue(E)
    E('s_mov_b32 s52, -1'); E('s_mov_b32 s53, 0xffff'); E('s_mov_b32 s54, -1'); E('s_mov_b32 s55, 0xffffff')
    E('s_mov_b32 s56, 0x00003f80'); E('s_mov_b32 s57, 0x3f800000'); E('s_mov_b32 s58, 0xffff0000')
    E('s_mul_i32 s59, s46, 1536'); E('s_mul_i32 s60, s46, 896')
    E('v_mul_u32_u24 v12, 43, v1'); E('v_lshrrev_b32 v12, 9, v12'); E('v_mul_u32_u24 v13, 12, v12'); E('v_sub_u32 v13, v1, v13')
    E('s_lshl_b32 s49, s46, 3'); E('v_add_u32 v12, s49, v12'); E('v_mul_u32_u24 v5, 2688, v12'); E('v_lshl_add_u32 v5, v13, 4, v5')
    E('s_mul_i32 s49, s44, 168'); E('v_add_u32 v5, s49, v5')
    E('v_mul_u32_u24 v12, 37, v1'); E('v_lshrrev_b32 v12, 9, v12'); E('v_mul_u32_u24 v13, 14, v12'); E('v_sub_u32 v13, v1, v13')
    E('s_lshl_b32 s49, s46, 2'); E('v_add_u32 v12, s49, v12'); E('v_mul_u32_u24 v6, 3584, v12'); E('v_lshl_add_u32 v6, v13, 4, v6')
    E('s_mul_i32 s49, s44, 224'); E('v_add_u32 v6, s49, v6')
    E('v_and_b32 v12, 15, v1'); E('v_lshrrev_b32 v13, 2, v12'); E('v_lshl_add_u32 v13, v2, 3, v13')
    E('v_and_b32 v12, 3, v12'); E('v_lshlrev_b32 v12, 3, v12'); E('v_bfe_u32 v14, v1, 4, 1')
    E('v_mul_u32_u24 v7, 192, v13'); E('v_add_u32 v7, v7, v12'); E('v_lshl_add_u32 v7, v14, 5, v7')
    E('v_mul_u32_u24 v8, 224, v13'); E('v_add_u32 v8, v8, v12'); E('v_mul_u32_u24 v14, %d, v14' % UPOFF); E('v_add_u32 v8, v8, v14')
    E('s_lshl_b32 s49, s45, 7'); E('s_lshl_b32 s50, s47, 5'); E('s_add_u32 s49, s49, s50'); E('v_add_u32 v12, s49, v3')
    E('v_lshrrev_b32 v13, 4, v12'); E('v_lshlrev_b32 v240, 10, v13'); E('v_and_b32 v13, 15, v12'); E('v_lshl_add_u32 v240, v13, 4, v240')
    E('v_lshl_add_u32 v240, v2, 9, v240')
    E('s_lshl_b32 s49, s45, 2'); E('s_add_u32 s49, s49, s47'); E('s_mul_i32 s51, s49, 112'); E('s_mul_i32 s50, s44, 7'); E('s_add_u32 s51, s51, s50')
    E('s_lshl_b32 s51, s51, 10'); E('s_add_u32 s51, s51, %d' % H_OFF); E('v_lshlrev_b32 v242, 4, v1'); E('v_add_u32 v242, s51, v242')
    E('v_cmp_le_u32 s[62:63], 32, v1')
    E.fst(5)
    E('v_mov_b32 v%d, s58' % (T + 12))
    E.xmark = len(E.vm)
    E('s_mov_b32 s49, 0x3f803f80')
    for rho in range(2):
        A = T + rho * 4
        for t in range(7):
            E.vwait(('x', rho * 7 + t))
            for i in range(4):
                d = XR + (rho * 7 + t) * 4 + i
                first = (t == 0 and i < 2)
                E('v_dot2_f32_bf16 v%d, v%d, s49, %s' % (A + (i & 1), d, '0' if first else 'v%d' % (A + (i & 1))))
                E('v_dot2_f32_bf16 v%d, v%d, v%d, %s' % (A + 2 + (i & 1), d, d, '0' if first else 'v%d' % (A + 2 + (i & 1))))
    for rho in range(2):
        A = T + rho * 4
        E('v_add_f32 v%d, v%d, v%d' % (A, A, A + 1)); E('v_add_f32 v%d, v%d, v%d' % (A + 2, A + 2, A + 3))
    for pat in ('quad_perm:[1,0,3,2]', 'quad_perm:[2,3,0,1]', 'row_half_mirror'):
        for rho in range(2):
            for q in (0, 2):
                r = T + rho * 4 + q
                E('v_add_f32_dpp v%d, v%d, v%d %s row_mask:0xf bank_mask:0xf' % (r, r, r, pat))
    if WARM:
        E('v_mul_u32_u24 v16, 43, v1'); E('v_lshrrev_b32 v16, 7, v16')
        E('v_mul_u32_u24 v17, 3, v16'); E('v_sub_u32 v17, v1, v17')
        E('s_mul_i32 s49, s46, 7'); E('v_add_u32 v16, s49, v16'); E('v_lshlrev_b32 v16, 3, v16'); E('s_and_b32 s49, s45, 7'); E('v_add_u32 v16, s49, v16')
        E('v_lshlrev_b32 v17, 7, v17')
        E('v_min_u32 v18, 0xb8, v17'); E('v_mul_u32_u24 v19, 2688, v16'); E('v_add_u32 v18, v18, v19'); E('s_mul_i32 s49, s44, 168'); E('v_add_u32 v18, s49, v18')
        E('v_min_u32 v17, 0xd8, v17'); E('v_mul_u32_u24 v19, 3584, v16'); E('v_add_u32 v17, v17, v19'); E('s_mul_i32 s49, s44, 224'); E('v_add_u32 v17, s49, v17')
        E('s_mov_b64 exec, 0x1fffff')
        E('buffer_load_dword v244, v18, s[%d:%d], 0 offen' % (SWQ, SWQ + 3))
        E('buffer_load_dword v245, v17, s[%d:%d], 0 offen' % (SWG, SWG + 3))
        E('buffer_load_dword v246, v17, s[%d:%d], 0 offen' % (SWU, SWU + 3))
        E('s_mov_b64 exec, -1')
    E.fst(2)
    E('s_mov_b32 s49, 0x%x' % f32bits(1.0 / 448))
    for rho in range(2):
        A = T + rho * 4; nm = 10 + 2 * rho; rr = 11 + 2 * rho
        E('v_mul_f32 v%d, s49, v%d' % (A, A)); E('v_mul_f32 v%d, s49, v%d' % (A + 2, A + 2))
        E('v_fma_f32 v%d, -v%d, v%d, v%d' % (A + 2, A, A, A + 2)); E('v_max_f32 v%d, 0, v%d' % (A + 2, A + 2))
        E('v_cvt_pk_bf16_f32 v%d, v%d, v%d' % (A + 1, A, A + 2))
        E('v_lshlrev_b32 v%d, 16, v%d' % (A, A + 1)); E('v_and_b32 v%d, s58, v%d' % (A + 2, A + 1))
        E('v_xor_b32 v%d, 0x80000000, v%d' % (nm, A))
        E('v_add_f32 v%d, 0x%x, v%d' % (A + 2, f32bits(1e-5), A + 2))
        E('v_cvt_pk_bf16_f32 v%d, v%d, v%d' % (A + 2, A + 2, A + 2)); E('v_and_b32 v%d, s58, v%d' % (A + 2, A + 2))
        E('v_sqrt_f32 v%d, v%d' % (A + 2, A + 2))
        E('v_cvt_pk_bf16_f32 v%d, v%d, v%d' % (A + 2, A + 2, A + 2)); E('v_and_b32 v%d, s58, v%d' % (A + 2, A + 2))
        E('v_rcp_f32 v%d, v%d' % (rr, A + 2))
        E('v_fma_f32 v%d, -v%d, v%d, 2.0' % (A + 3, A + 2, rr)); E('v_mul_f32 v%d, v%d, v%d' % (rr, rr, A + 3))
    E('s_lshr_b32 s49, s46, 1'); E('s_mul_i32 s49, s49, 28672'); E('s_and_b32 s50, s46, 1'); E('s_lshl_b32 s50, s50, 4')
    E('v_lshrrev_b32 v14, 3, v1'); E('v_add_u32 v14, s50, v14'); E('v_and_b32 v15, 7, v1'); E('v_xor_b32 v14, v14, v15')
    E('v_lshlrev_b32 v14, 4, v14')
    E('v_lshrrev_b32 v9, 1, v15'); E('v_lshl_add_u32 v14, v9, 10, v14'); E('v_and_b32 v9, 1, v15'); E('v_lshl_add_u32 v14, v9, 9, v14')
    E('v_add_u32 v14, s49, v14')
    for rho in range(2):
        for t in range(7):
            x = XR + (rho * 7 + t) * 4
            if rho * 7 + t in (0, 3, 6): dma_stage(E, (rho * 7 + t) // 3)
            for o in norm_ops(x, 10 + 2 * rho, 11 + 2 * rho): E(o)
            E.lds('ds_write_b128 v14, v[%d:%d] offset:%d' % (x, x + 3, t * 4096 + rho * 128), 'xw')
    E.fst(3)
    E('s_mul_i32 s49, s47, 28672')
    for q in range(4):
        E('v_xor_b32 v%d, %d, v3' % (10 + q, 2 * q)); E('v_xor_b32 v%d, v%d, v2' % (10 + q, 10 + q)); E('v_lshlrev_b32 v%d, 4, v%d' % (10 + q, 10 + q))
        E('v_lshl_add_u32 v%d, v2, 9, v%d' % (10 + q, 10 + q)); E('v_add_u32 v%d, s49, v%d' % (10 + q, 10 + q))
    E('s_waitcnt lgkmcnt(0)'); E('s_barrier')
    for s_ in range(28):
        E.lds('ds_read_b128 v[%d:%d], v%d offset:%d' % (X(s_), X(s_) + 3, 10 + (s_ & 3), s_ * 1024), 'xr')
    E('s_waitcnt lgkmcnt(0)'); E('s_barrier')
    for g in range(3, 5): dma_stage(E, g)
    E.next_dma = 5
    E('s_mul_i32 s65, s47, 1536'); E('s_mul_i32 s49, s48, %d' % (32 * 2688)); E('v_subrev_u32 v238, s49, v5')
    E.fst(4)
    if os.environ.get('RT'): E('s_memrealtime s[76:77]'); E('s_waitcnt lgkmcnt(0)')

QF = 244
def kv_prefetch_addr(E):
    E('v_lshlrev_b32 v243, 4, v1')
    E('v_bfe_u32 v12, v1, 4, 1'); E('v_lshlrev_b32 v12, 7, v12'); E('v_xor_b32 v241, v243, v12')

def kv_prefetch(E):
    E('s_lshl_b32 s49, s44, 17'); E('s_lshl_b32 s50, s45, 3'); E('s_mul_i32 s51, s46, 3'); E('s_add_u32 s50, s50, s51')
    E('s_mul_i32 s51, s46, 3072')
    for n in range(3):
        E('s_add_i32 s61, s50, %d' % (n - 16)); E('s_max_i32 s61, s61, 0'); E('s_lshl_b32 s61, s61, 10'); E('s_add_u32 s61, s61, s49')
        E('s_add_u32 s92, s61, %d' % (16 << 17)); E('s_add_u32 m0, s51, %d' % (KL + n * 1024))
        E.vmem('buffer_load_dwordx4 v243, s[%d:%d], s92 offen%s lds' % (SWS, SWS + 3, SC), 'kv')
        E('s_add_u32 s92, s61, %d' % (32 << 17)); E('s_add_u32 m0, s51, %d' % (VL + n * 1024))
        E.vmem('buffer_load_dwordx4 v241, s[%d:%d], s92 offen%s lds' % (SWS, SWS + 3, SC), 'kv')
    E('s_lshl_b32 s50, s45, 3'); E('s_add_u32 s50, s50, s46'); E('s_lshl_b32 s61, s50, 10'); E('s_add_u32 s61, s61, s49')
    E.vmem('buffer_load_dwordx4 v[%d:%d], v243, s[%d:%d], s61 offen%s' % (QF, QF + 3, SWS, SWS + 3, SC), 'kv')

def kv_poll_issue(E):
    l = E.newlabel('kvp')
    E('s_cmp_lg_u32 s46, 0'); E('s_cbranch_scc1 %s' % l)
    E('v_add_u32 v12, 1, v1'); E('v_lshrrev_b32 v13, 1, v12')
    E('v_subrev_u32 v13, 1, v13'); E('v_max_i32 v13, 0, v13')
    E('v_and_b32 v14, 1, v1'); E('v_sub_u32 v14, 2, v14')
    E('v_cmp_eq_u32 vcc, 0, v1'); E('v_cndmask_b32 v14, v14, 0, vcc')
    E('v_lshlrev_b32 v14, 4, v14'); E('v_add_u32 v14, s44, v14')
    E('v_mul_u32_u24 v14, 43, v14'); E('v_lshrrev_b32 v14, 7, v14')
    E('v_sub_u32 v13, s45, v13'); E('v_max_i32 v13, 0, v13')
    E('v_lshl_add_u32 v13, v13, 4, v14'); E('v_lshlrev_b32 v255, 3, v13'); E('v_add_u32 v255, %d, v255' % FLAG_OFF)
    E('s_mov_b64 exec, 0x7f')
    E('buffer_load_dwordx2 v[252:253], v255, s[%d:%d], 0 offen sc1' % (SFL, SFL + 3))
    E('s_mov_b64 exec, -1')
    E.lines.append(l + ':')
def kv_poll_check(E, nvm):
    l = E.newlabel('kvc')
    E('s_cmp_lg_u32 s46, 0'); E('s_cbranch_scc1 %s' % l)
    E('s_waitcnt vmcnt(%d)' % nvm)
    E('s_mov_b64 exec, 0x7f')
    E('v_cmp_ne_u64 vcc, s[90:91], v[252:253]')
    E('s_mov_b64 exec, -1')
    E('s_cmp_eq_u64 vcc, 0'); E('s_cbranch_scc1 %s' % l)
    poll(E, 7)
    E.lines.append(l + ':')

def stage1_path(E, ch):
    steps = [(1, s) for s in range(28)] + [(2, s) for s in range(28)]
    def stage(st): return st[1] >> 2 if st[0] == 1 else 7 + (st[1] >> 1)
    def tiles(st):
        if st[0] == 1: return [0, 1] if ch == 0 else [2]
        return [0, 1, 2] if ch == 0 else [3, 4, 5, 6]
    def wf(buf, ti): return WF + buf * 16 + ti * 4
    def setaddr(st): E('v_add_u32 v9, %d, v%d' % (slot_addr(stage(st)), 7 if st[0] == 1 else 8))
    def read(st, ti, t, buf):
        if st[0] == 1: off = (st[1] & 3) * 16 * 192 + t * 56; d2 = 768
        else: off = (st[1] & 1) * 3584 + t * 32; d2 = 896
        r = wf(buf, ti)
        E.lds('ds_read_b64_tr_b16 v[%d:%d], v9 offset:%d' % (r, r + 1, off), ('w', st, t))
        E.lds('ds_read_b64_tr_b16 v[%d:%d], v9 offset:%d' % (r + 2, r + 3, off + d2), ('w', st, t))
    E.deferred = None; E.defer_skip = 0
    E.vwait(('st', 0)); E('s_barrier')
    setaddr(steps[0])
    for ti, t in enumerate(tiles(steps[0])): read(steps[0], ti, t, 0)
    for idx, st in enumerate(steps):
        buf = idx & 1
        nxt = steps[idx + 1] if idx + 1 < len(steps) else None
        tl = tiles(st)
        for ti, t in enumerate(tl):
            E.lwait(('w', st, t))
            a = ACC + 16 * ti
            c = ('v[%d:%d]' % (a, a + 15)) if st[1] > 0 else '0'
            w = wf(buf, ti); x = X(st[1])
            E('v_mfma_f32_32x32x16_bf16 v[%d:%d], v[%d:%d], v[%d:%d], %s' % (a, a + 15, w, w + 3, x, x + 3, c))
            if ti == len(tl) - 1 and getattr(E, 'deferred', None) and (nxt is None or stage(nxt) == stage(st)) and E.defer_skip == 0:
                for gg in E.deferred: dma_stage(E, gg)
                E.deferred = None
            if ti == 0 and nxt is not None and stage(nxt) != stage(st):
                ng = stage(nxt); g = stage(st)
                has_bar = (ng <= 7) or (ng & 1) or not SUPER
                if has_bar:
                    if ng == 9: E.vwait('stq')
                    if ng == 7: nonce_finish(E)
                    if ng == 17: kv_poll_check(E, sum(1 for t in E.vm[E.kvp_mark:] if not (isinstance(t, tuple) and t[0] == 'phantom')))
                    last_need = ng + 1 if (SUPER and ng >= 7) else ng
                    E.vwait(('st', last_need)); E('s_barrier')
                    if ng == 9: publish(E, 1)
                    lim = min(g + 9 if g >= 1 else 9, 20)
                    pend = []
                    for _ in range(3 if SUPER else 2):
                        if E.next_dma <= lim: pend.append(E.next_dma); E.next_dma += 1
                    if SOLO:
                        for gg in pend: dma_stage(E, gg, 'solo' if ((gg < 7) == (ch == 1)) else 'skip')
                    elif ch == 0 or not STAGGER:
                        for gg in pend: dma_stage(E, gg)
                    else:
                        E.deferred = pend
                    if ng == 17: kv_prefetch(E)
                if ng == 13:
                    kv_poll_issue(E); E.kvp_mark = len(E.vm)
                if ng == 16: kv_prefetch_addr(E)
                setaddr(nxt)
            if nxt is not None:
                ntl = tiles(nxt)
                if ti < len(ntl): read(nxt, ti, ntl[ti], buf ^ 1)
                if ti == len(tl) - 1:
                    for tj in range(len(tl), len(ntl)): read(nxt, tj, ntl[tj], buf ^ 1)
        if st == (1, 27):
            epilogue_qkv(E, ch)
    E.fst(6)
    epilogue_h(E, ch)

def epilogue_qkv(E, ch):
    P = T
    for ti, t in enumerate([0, 1] if ch == 0 else [2]):
        a = ACC + 16 * ti
        E('s_mul_i32 s49, s44, 3'); E('s_add_u32 s49, s49, %d' % t); E('s_lshl_b32 s50, s49, 17')
        E('s_cmp_ge_u32 s49, 32'); E('s_cselect_b32 s51, 0x3f803f80, 0'); E('v_mov_b32 v12, s51')
        for i in range(8):
            E('v_cvt_pk_bf16_f32 v%d, v%d, v%d' % (P + i, a + 2 * i, a + 2 * i + 1))
        E('v_cndmask_b32 v%d, v%d, v12, s[62:63]' % (P + 6, P + 6))
        E('v_cndmask_b32 v%d, v%d, v12, s[62:63]' % (P + 7, P + 7))
        E.vmem('buffer_store_dwordx4 v[%d:%d], v240, s[%d:%d], s50 offen%s' % (P, P + 3, SWS, SWS + 3, SC), 'stq')
        E.vmem('buffer_store_dwordx4 v[%d:%d], v240, s[%d:%d], s50 offen offset:256%s' % (P + 4, P + 7, SWS, SWS + 3, SC), 'stq')
        P = T + 8

def epilogue_h(E, ch):
    E('v_mov_b32 v15, s58')
    tl = [0, 1, 2] if ch == 0 else [3, 4, 5, 6]
    for ti, t in enumerate(tl):
        a = ACC + 16 * ti
        G = T; U = T + 4; H = WF + 4 * ti
        for i in range(4):
            E('v_cvt_pk_bf16_f32 v%d, v%d, v%d' % (G + i, a + 2 * i, a + 2 * i + 1))
            E('v_cvt_pk_bf16_f32 v%d, v%d, v%d' % (U + i, a + 8 + 2 * i, a + 8 + 2 * i + 1))
        for i in range(4):
            b = a + 4 * i
            E('v_lshlrev_b32 v%d, 16, v%d' % (b + 0, G + i)); E('v_and_b32 v%d, v15, v%d' % (b + 1, G + i))
            E('v_lshlrev_b32 v%d, 16, v%d' % (b + 2, U + i)); E('v_and_b32 v%d, v15, v%d' % (b + 3, U + i))
        for i in range(4):
            b = a + 4 * i
            E('v_mul_f32 v%d, v%d, v%d' % (b + 0, b + 0, b + 2)); E('v_mul_f32 v%d, v%d, v%d' % (b + 1, b + 1, b + 3))
        for i in range(4):
            b = a + 4 * i
            E('v_cvt_pk_bf16_f32 v%d, v%d, v%d' % (H + i, b + 0, b + 1))
        E('s_mov_b32 s50, %d' % (t * 1024))
        E.vmem('buffer_store_dwordx4 v[%d:%d], v242, s[%d:%d], s50 offen%s' % (H, H + 3, SWS, SWS + 3, SC), 'sth')

S0 = 32; PB = 104; KF = 144; VF = 160; OA = 176; BI = 184; NEG = 200
def stage2(E):
    E('v_and_b32 v3, 15, v1'); E('v_lshrrev_b32 v4, 4, v1')
    E('s_and_b32 s52, s46, 1'); E('s_lshl_b32 s52, s52, 4'); E('s_add_u32 s52, s52, 256')
    E('v_add_u32 v5, s52, v3'); E('v_lshlrev_b32 v6, 2, v4'); E('v_sub_u32 v5, v5, v6')
    E('s_mov_b32 s56, 0xf149f2ca'); E('v_mov_b32 v7, s56')
    for n in range(4): E('v_mov_b32 v%d, s56' % (NEG + n))
    E('s_movk_i32 s57, 256')
    for bi, tp in enumerate([0, 1, 16, 17]):
        for i in range(4):
            E('v_subrev_u32 v6, %d, v5' % (16 * tp + i)); E('v_cmp_gt_u32 vcc, s57, v6'); E('v_cndmask_b32 v%d, v7, 0, vcc' % (BI + 4 * bi + i))
    E('s_lshl_b32 s52, s45, 3'); E('s_sub_i32 s58, 16, s52'); E('s_and_b32 s52, s46, 6'); E('s_sub_i32 s58, s58, s52')
    E('s_lshr_b32 s52, s46, 1'); E('s_lshl_b32 s52, s52, 11')
    E('v_lshlrev_b32 v2, 4, v1'); E('v_add_u32 v8, s52, v2'); E('v_add_u32 v8, %d, v8' % KL)
    E('v_and_b32 v12, 15, v1'); E('v_lshrrev_b32 v13, 2, v12'); E('v_lshl_add_u32 v13, v4, 2, v13')
    E('v_bfe_u32 v14, v1, 1, 1'); E('v_lshlrev_b32 v15, 3, v14'); E('v_xor_b32 v13, v13, v15')
    E('v_lshlrev_b32 v9, 4, v13'); E('v_lshl_add_u32 v9, v14, 8, v9'); E('v_and_b32 v14, 1, v1'); E('v_lshl_add_u32 v9, v14, 3, v9')
    E('v_add_u32 v9, s52, v9')
    E('s_lshl_b32 s50, s45, 3'); E('s_add_u32 s50, s50, s46'); E('s_lshl_b32 s52, s50, 4'); E('s_add_u32 s52, s52, s44'); E('s_lshl_b32 s52, s52, 10'); E('s_add_u32 s55, s52, %d' % O_OFF)
    E.vwait('kv'); E('s_barrier')
    E.fst(7)
    labs = 'L_a_slow'; labj = 'L_a_join'
    E('s_cmp_gt_i32 s58, 0'); E('s_cbranch_scc1 %s' % labs)
    E.flush(0)
    lg0 = list(E.lg); vm0 = list(E.vm)
    a_scores(E, False)
    E('s_branch %s' % labj)
    E.label(labs)
    E.lg = list(lg0); E.vm = list(vm0)
    a_scores(E, True)
    E.label(labj)
    E.flush(8)
    E.vwait('sth'); arrive(E, 2)
    stage3_setup(E)
    stage3_w_prefetch(E)
    a_rest(E)

def a_scores(E, slow):
    bi_of = {0: 0, 1: 1, 16: 2, 17: 3}
    for tp in range(3):
        E.lds('ds_read_b128 v[%d:%d], v8 offset:%d' % (KF + 4 * (tp & 3), KF + 4 * (tp & 3) + 3, tp * 1024), ('k', tp))
    for tp in range(18):
        if tp + 3 < 18:
            n = tp + 3
            E.lds('ds_read_b128 v[%d:%d], v8 offset:%d' % (KF + 4 * (n & 3), KF + 4 * (n & 3) + 3, n * 1024), ('k', n))
        E.lwait(('k', tp))
        k = KF + 4 * (tp & 3); s = S0 + 4 * tp
        c = 'v[%d:%d]' % (BI + 4 * bi_of[tp], BI + 4 * bi_of[tp] + 3) if tp in bi_of else '0'
        if slow:
            l1 = E.newlabel('sl'); l2 = E.newlabel('sl')
            E('s_cmp_gt_i32 s58, %d' % tp); E('s_cbranch_scc1 %s' % l1)
            E('v_mfma_f32_16x16x32_bf16 v[%d:%d], v[%d:%d], v[%d:%d], %s' % (s, s + 3, k, k + 3, QF, QF + 3, c))
            E('s_branch %s' % l2)
            E.lines.append(l1 + ':')
            E('v_mfma_f32_16x16x32_bf16 v[%d:%d], v[%d:%d], v[%d:%d], v[%d:%d]' % (s, s + 3, k, k + 3, QF, QF + 3, NEG, NEG + 3))
            E.lines.append(l2 + ':')
        else:
            E('v_mfma_f32_16x16x32_bf16 v[%d:%d], v[%d:%d], v[%d:%d], %s' % (s, s + 3, k, k + 3, QF, QF + 3, c))

def a_vread(E, b):
    for mt in range(2):
        vf = VF + 8 * (b & 1) + 4 * mt
        for r in range(2):
            E.lds('ds_read_b64_tr_b16 v[%d:%d], v9 offset:%d' % (vf + 2 * r, vf + 2 * r + 1, VL + (2 * b + r) * 1024 + mt * 512), ('v', b, mt))

def a_rest(E):
    a_vread(E, 0)
    n = 72
    E('v_max3_f32 v12, v%d, v%d, v%d' % (S0, S0 + 1, S0 + 2)); E('v_max3_f32 v13, v%d, v%d, v%d' % (S0 + 3, S0 + 4, S0 + 5))
    i = 6; tog = 0
    while i + 1 < n:
        r = 12 + tog
        E('v_max3_f32 v%d, v%d, v%d, v%d' % (r, r, S0 + i, S0 + i + 1)); i += 2; tog ^= 1
    E('v_max_f32 v12, v12, v13')
    E('v_mov_b32 v13, v12'); E('v_permlane16_swap_b32 v12, v13'); E('v_max_f32 v12, v12, v13')
    E('v_mov_b32 v13, v12'); E('v_permlane32_swap_b32 v12, v13'); E('v_max_f32 v12, v12, v13')
    c = (28 ** -0.5) * math.log2(math.e)
    E('v_mov_b32 v15, 0x%x' % f32bits(c)); E('v_mul_f32 v12, v15, v12')
    for b in range(9):
        for q in range(8):
            r = S0 + 8 * b + q
            E('v_fma_f32 v%d, v%d, v15, -v12' % (r, r))
        for q in range(8):
            r = S0 + 8 * b + q
            E('v_exp_f32 v%d, v%d' % (r, r))
        for q in range(4):
            r = S0 + 8 * b + 2 * q
            E('v_cvt_pk_bf16_f32 v%d, v%d, v%d' % (PB + 4 * b + q, r, r + 1))
        if b + 1 < 9: a_vread(E, b + 1)
        for mt in range(2):
            E.lwait(('v', b, mt))
            vf = VF + 8 * (b & 1) + 4 * mt; o = OA + 4 * mt; p = PB + 4 * b
            cc = 'v[%d:%d]' % (o, o + 3) if b > 0 else '0'
            E('v_mfma_f32_16x16x32_bf16 v[%d:%d], v[%d:%d], v[%d:%d], %s' % (o, o + 3, vf, vf + 3, p, p + 3, cc))
    E('v_and_b32 v13, 15, v1'); E('v_add_u32 v13, 48, v13'); E('v_lshlrev_b32 v13, 2, v13')
    E.lds('ds_bpermute_b32 v14, v13, v%d' % (OA + 4), 'bp')
    E('v_cmp_le_u32 vcc, 48, v1')
    E.lwait('bp')
    E('v_rcp_f32 v14, v14')
    for i in range(8): E('v_mul_f32 v%d, v%d, v14' % (OA + i, OA + i))
    for i in range(4): E('v_cndmask_b32 v%d, v%d, 0, vcc' % (OA + 4 + i, OA + 4 + i))
    for q in range(4): E('v_cvt_pk_bf16_f32 v%d, v%d, v%d' % (PB + q, OA + 2 * q, OA + 2 * q + 1))
    E.vmem('buffer_store_dwordx4 v[%d:%d], v2, s[%d:%d], s55 offen%s' % (PB, PB + 3, SWS, SWS + 3, SC), 'sto')

SWD, SWO, SX3, SOUT = 24, 28, 36, 32
ACC3 = 16; HB = 80; DEPTH = 3; WR = 128; NREG = 6; WF3 = 224; RING = 4096; VWD = 240
WDEPTH = {'D': 4, 'E': 1}; WNREG = {'D': 6, 'E': 7}
E7_SLOT = 154112
def stage3_setup(E):
    E('s_add_u32 s53, s46, 6'); E('s_and_b32 s53, s53, 7')
    E('s_and_b32 s61, s2, 7'); E('s_lshl_b32 s61, s61, 2'); E('s_lshr_b32 s49, s2, 3'); E('s_and_b32 s49, s49, 3'); E('s_add_u32 s61, s61, s49')
    E('s_lshr_b32 s62, s2, 5')
    srd(E, SWD, 16, 1792 * 896); srd(E, SWO, 8, 448 * 896); srd(E, SX3, 4, 2048 * 896); srd(E, SOUT, 18, 2048 * 896)
    E('v_lshrrev_b32 v12, 3, v1'); E('v_mul_u32_u24 v240, 896, v12'); E('v_bfe_u32 v13, v1, 4, 1'); E('v_lshlrev_b32 v13, 2, v13')
    E('v_and_b32 v12, 7, v1'); E('v_xor_b32 v12, v12, v13'); E('v_lshl_add_u32 v240, v12, 4, v240')
    E('s_lshl_b32 s49, s62, 7'); E('v_add_u32 v240, s49, v240')
    E('s_lshl_b32 s64, s53, 14'); E('s_add_u32 s64, s64, %d' % RING3)
    E('s_cmp_eq_u32 s53, 7'); E('s_cselect_b32 s64, %d, s64' % E7_SLOT)
    E('s_mul_i32 s63, s53, 10'); E('s_mul_i32 s49, s53, 9'); E('s_add_u32 s49, s49, 2'); E('s_cmp_ge_u32 s53, 2'); E('s_cselect_b32 s63, s49, s63')
    E('s_sub_u32 s49, s53, 6'); E('s_lshl_b32 s49, s49, 3'); E('s_cmp_ge_u32 s53, 6'); E('s_cselect_b32 s63, s49, s63')
    E('s_mul_i32 s65, s63, %d' % (32 * 896)); E('s_mul_i32 s49, s63, %d' % (28 * 896)); E('s_cselect_b32 s65, s49, s65')

def stage3_w_prefetch(E):
    l = E.newlabel('s3p'); le = E.newlabel('s3pe')
    E('s_cmp_ge_u32 s2, 224'); E('s_cbranch_scc1 %s' % l)
    E('s_cmp_ge_u32 s53, 6'); E('s_cbranch_scc1 %s' % le)
    vm0 = list(E.vm)
    for u in range(WDEPTH['D']): w3_issue(E, 'D', u)
    E('s_branch %s' % l)
    E.lines.append(le + ':')
    E.vm = vm0
    for u in range(WDEPTH['E']): w3_issue(E, 'E', u)
    E.lines.append(l + ':')
    E.vm = vm0
    E.flush(1)

def stage3(E):
    E('v_lshrrev_b32 v2, 5, v1'); E('v_lshlrev_b32 v3, 4, v1')
    E('v_and_b32 v12, 15, v1'); E('v_lshrrev_b32 v13, 2, v12'); E('v_lshl_add_u32 v13, v2, 2, v13'); E('v_lshlrev_b32 v5, 7, v13')
    E('v_bfe_u32 v13, v1, 4, 1'); E('v_lshlrev_b32 v13, 1, v13'); E('v_bfe_u32 v14, v1, 1, 1'); E('v_add_u32 v13, v13, v14')
    E('v_bfe_u32 v14, v1, 3, 1'); E('v_lshlrev_b32 v14, 2, v14'); E('v_xor_b32 v13, v13, v14'); E('v_lshl_add_u32 v5, v13, 4, v5')
    E('v_and_b32 v13, 1, v1'); E('v_lshl_add_u32 v5, v13, 3, v5')
    E('v_bfe_u32 v12, v1, 4, 1'); E('v_lshlrev_b32 v6, 14, v12'); E('v_lshl_add_u32 v6, v2, 8, v6'); E('v_and_b32 v12, 15, v1'); E('v_lshl_add_u32 v6, v12, 4, v6')
    E('v_add_u32 v5, s64, v5')
    lx = E.newlabel('s3x')
    E('s_cmp_lt_u32 s2, 224'); E('s_cbranch_scc1 %s' % lx)
    E('s_waitcnt vmcnt(0)'); arrive(E, 3); E('s_branch L_exit')
    E.lines.append(lx + ':')
    lE = 'L_s3_E'; l9 = 'L_s3_D9'; lj = 'L_s3_join'
    E('s_cmp_ge_u32 s53, 6'); E('s_cbranch_scc1 %s' % lE)
    E('v_xor_b32 v15, 64, v5')
    E('s_cmp_ge_u32 s53, 2'); E('s_cbranch_scc1 %s' % l9)
    lg0 = list(E.lg)
    vm0 = [('w', u) for u in range(WDEPTH['D']) for _ in range(4)] + ['sto']
    E.vm = list(vm0)
    E.flush(0)
    s3_stream(E, 'D', 10); E('s_branch %s' % lj)
    E.label(l9); E.vm, E.lg = list(vm0), list(lg0)
    s3_stream(E, 'D', 9); E('s_branch %s' % lj)
    E.label(lE); E.vm, E.lg = [('w', u) for u in range(WDEPTH['E']) for _ in range(4)] + ['sto'], list(lg0)
    E('v_lshl_add_u32 v5, v2, 9, v5'); E('v_xor_b32 v15, 64, v5')
    s3_stream(E, 'E', 8)
    E.label(lj)
    s3_reduce(E)

def w3_issue(E, kind, u):
    slot = u % WDEPTH[kind]
    wsrd = SWD if kind == 'D' else SWO; wstep = (32 if kind == 'D' else 28) * 896
    for qd in range(4):
        E('s_add_u32 m0, s64, %d' % (slot * RING + qd * 1024))
        E('s_add_u32 s52, s65, %d' % (u * wstep + qd * 8 * 896))
        E.vmem('buffer_load_dwordx4 v240, s[%d:%d], s52 offen lds' % (wsrd, wsrd + 3), ('w', u))

def w3_read(E, kind, u, dst):
    slot = u % WDEPTH[kind]
    for e in range(2):
        for ct in range(2):
            w = dst + e * 8 + ct * 4
            o1 = e * 16 * 128; d2 = (8 if kind == 'D' else 4) * 128
            off = slot * RING + o1
            av = 5 if ct == 0 else 15
            E.lds('ds_read_b64_tr_b16 v[%d:%d], v%d offset:%d' % (w, w + 1, av, off), ('wr', u, e, ct))
            E.lds('ds_read_b64_tr_b16 v[%d:%d], v%d offset:%d' % (w + 2, w + 3, av, off + d2), ('wr', u, e, ct))

def s3_stream(E, kind, nu):
    NR = WNREG[kind]; WD = WDEPTH[kind]
    for u in range(NR):
        E.vwait(('w', u))
        w3_read(E, kind, u, WR + 16 * u)
        if u == 0:
            E.vwait('sto'); arrive(E, 3)
        E('s_waitcnt lgkmcnt(0)')
        if u + WD < nu: w3_issue(E, kind, u + WD)
    E.fst(1)
    load_nonce(E)
    E('s_lshr_b32 s49, s61, 1'); E('s_lshl_b32 s49, s49, 7'); E('s_add_u32 s49, s49, %d' % (FLAG_OFF + (2048 if kind == 'D' else 4096)))
    if kind == 'D':
        E('s_lshl_b32 s50, s63, 5'); E('s_mul_i32 s51, s50, 9363'); E('s_lshr_b32 s51, s51, 20')
        E('s_add_u32 s50, s50, %d' % (nu * 32 - 1)); E('s_mul_i32 s50, s50, 9363'); E('s_lshr_b32 s50, s50, 20')
        E('v_add_u32 v255, s51, v1'); E('v_min_u32 v255, s50, v255')
        npl = 4
    else:
        E('v_add_u32 v255, s63, v1')
        npl = 8
    E('v_lshlrev_b32 v255, 3, v255'); E('v_add_u32 v255, s49, v255')
    poll(E, npl)
    E.vm.append('drained');
    E.fst(8)
    if kind == 'D':
        E('s_mul_i32 s51, s61, 224'); E('s_lshl_b32 s52, s63, 1'); E('s_add_u32 s51, s51, s52'); E('s_lshl_b32 s51, s51, 10'); E('s_add_u32 s51, s51, %d' % H_OFF)
    else:
        E('s_lshl_b32 s51, s61, 6'); E('s_add_u32 s51, s51, s63'); E('s_lshl_b32 s51, s51, 10'); E('s_add_u32 s51, s51, %d' % O_OFF)
    def issue_b(u):
        slot = u % DEPTH
        for e in range(2):
            for tt in range(2):
                r = HB + slot * 16 + (e * 2 + tt) * 4
                if kind == 'D':
                    E('s_add_u32 s52, s51, %d' % ((tt * 112 + 2 * u + e) * 1024))
                    E.vmem('buffer_load_dwordx4 v[%d:%d], v3, s[%d:%d], s52 offen%s' % (r, r + 3, SWS, SWS + 3, LDF), ('h', u))
                else:
                    E('s_add_u32 s52, s51, %d' % ((tt * 32 + u) * 1024 + e * 512))
                    E.vmem('buffer_load_dwordx4 v[%d:%d], v6, s[%d:%d], s52 offen%s' % (r, r + 3, SWS, SWS + 3, LDF), ('h', u))
    for u in range(min(DEPTH, nu)): issue_b(u)
    for u in range(nu):
        slot = u % DEPTH
        if u >= NR:
            w3_read(E, kind, u, WF3 if kind == 'D' else WR)
        E.vwait(('h', u))
        if u == 0: E.fst(9)
        for e in range(2):
            for ct in range(2):
                if u >= NR: E.lwait(('wr', u, e, ct))
                w = (WR + 16 * u if u < NR else (WF3 if kind == 'D' else WR)) + e * 8 + ct * 4
                for tt in range(2):
                    a = ACC3 + (ct * 2 + tt) * 16; b = HB + slot * 16 + (e * 2 + tt) * 4
                    c = 'v[%d:%d]' % (a, a + 15) if (u > 0 or e > 0) else '0'
                    E('v_mfma_f32_32x32x16_bf16 v[%d:%d], v[%d:%d], v[%d:%d], %s' % (a, a + 15, w, w + 3, b, b + 3, c))
        if u + DEPTH < nu: issue_b(u + DEPTH)
    E.flush(12)
    E.fst(10)
    if kind == 'E':
        lw = E.newlabel('cnto')
        E('v_mov_b32 v252, %d' % (NONCE_LDS + 12))
        E.label(lw)
        E('ds_read_b32 v254, v252'); E('s_waitcnt lgkmcnt(0)'); E('v_readfirstlane_b32 s92, v254'); E('s_nop 3')
        E('s_cmp_lt_u32 s92, 8'); E('s_cbranch_scc1 %s' % lw)
        E('s_cmp_eq_u32 s53, 6'); E('s_cselect_b32 s49, 0, %d' % KL)
    else:
        E('s_mov_b32 s49, s64')
    E('v_add_u32 v13, s49, v3')
    for t in range(4):
        for a in range(4):
            r = ACC3 + t * 16 + a * 4
            E.lds('ds_write_b128 v13, v[%d:%d] offset:%d' % (r, r + 3, t * 4096 + a * 1024), 'pw')

def s3_reduce(E):
    E('v_and_b32 v7, 31, v0'); E('v_bfe_u32 v8, v0, 5, 2'); E('v_bfe_u32 v9, v0, 7, 1'); E('v_lshrrev_b32 v10, 8, v0')
    E('s_lshl_b32 s49, s61, 6'); E('v_lshl_add_u32 v11, v10, 5, v7'); E('v_add_u32 v11, s49, v11'); E('v_mul_u32_u24 v11, 896, v11')
    E('v_lshlrev_b32 v12, 5, v9'); E('v_lshl_add_u32 v12, v8, 3, v12')
    E('s_lshl_b32 s49, s62, 7'); E('v_lshl_add_u32 v11, v12, 1, v11'); E('v_add_u32 v11, s49, v11')
    E.vmem('buffer_load_dwordx4 v[244:247], v11, s[%d:%d], 0 offen' % (SX3, SX3 + 3), 'x')
    E('s_waitcnt lgkmcnt(0)'); E('s_barrier')
    E('v_lshlrev_b32 v13, 1, v9'); E('v_add_u32 v13, v13, v10'); E('v_lshl_add_u32 v13, v13, 2, v8'); E('v_lshlrev_b32 v13, 10, v13')
    E('v_lshl_add_u32 v13, v7, 4, v13')
    E('v_add_u32 v14, %d, v13' % RING3); E('v_add_u32 v15, %d, v13' % (RING3 + 3 * 16384)); E('v_add_u32 v12, %d, v13' % KL)
    R0 = 64
    for w in range(8):
        for hh in range(2):
            r = R0 + (w * 2 + hh) * 4
            if w < 3: av, off = 14, w * 16384
            elif w < 6: av, off = 15, (w - 3) * 16384
            elif w == 6: av, off = 13, 0
            else: av, off = 12, 0
            E.lds('ds_read_b128 v[%d:%d], v%d offset:%d' % (r, r + 3, av, off + hh * 512), ('pr', w))
    F = 32; S = 40
    E.lwait(('pr', 1))
    for i in range(8): E('v_add_f32 v%d, v%d, v%d' % (F + i, R0 + i, R0 + 8 + i))
    for w in range(2, 6):
        E.lwait(('pr', w))
        for i in range(8): E('v_add_f32 v%d, v%d, v%d' % (F + i, F + i, R0 + w * 8 + i))
    E.lwait(('pr', 7))
    for i in range(8): E('v_add_f32 v%d, v%d, v%d' % (S + i, R0 + 48 + i, R0 + 56 + i))
    E('s_mov_b32 s58, 0xffff0000'); E('s_mov_b32 s59, 0x%x' % f32bits(-math.log2(math.e)))
    for i in range(4):
        E('v_cvt_pk_bf16_f32 v%d, v%d, v%d' % (48 + i, F + 2 * i, F + 2 * i + 1)); E('v_cvt_pk_bf16_f32 v%d, v%d, v%d' % (52 + i, S + 2 * i, S + 2 * i + 1))
    for i in range(4):
        E('v_lshlrev_b32 v%d, 16, v%d' % (F + 2 * i, 48 + i)); E('v_and_b32 v%d, s58, v%d' % (F + 2 * i + 1, 48 + i))
        E('v_lshlrev_b32 v%d, 16, v%d' % (S + 2 * i, 52 + i)); E('v_and_b32 v%d, s58, v%d' % (S + 2 * i + 1, 52 + i))
    for i in range(8): E('v_mul_f32 v%d, s59, v%d' % (48 + i, F + i))
    for i in range(8): E('v_exp_f32 v%d, v%d' % (48 + i, 48 + i))
    for i in range(8): E('v_add_f32 v%d, 1.0, v%d' % (48 + i, 48 + i))
    for i in range(8): E('v_rcp_f32 v%d, v%d' % (48 + i, 48 + i))
    for i in range(8): E('v_mul_f32 v%d, v%d, v%d' % (F + i, F + i, 48 + i))
    for i in range(4): E('v_cvt_pk_bf16_f32 v%d, v%d, v%d' % (48 + i, F + 2 * i, F + 2 * i + 1))
    for i in range(4):
        E('v_lshlrev_b32 v%d, 16, v%d' % (F + 2 * i, 48 + i)); E('v_and_b32 v%d, s58, v%d' % (F + 2 * i + 1, 48 + i))
    for i in range(8): E('v_mul_f32 v%d, v%d, v%d' % (F + i, F + i, S + i))
    for i in range(4): E('v_cvt_pk_bf16_f32 v%d, v%d, v%d' % (48 + i, F + 2 * i, F + 2 * i + 1))
    E.vwait('x')
    for i in range(4):
        E('v_lshlrev_b32 v%d, 16, v%d' % (F + 2 * i, 48 + i)); E('v_and_b32 v%d, s58, v%d' % (F + 2 * i + 1, 48 + i))
        E('v_lshlrev_b32 v%d, 16, v%d' % (S + 2 * i, 244 + i)); E('v_and_b32 v%d, s58, v%d' % (S + 2 * i + 1, 244 + i))
    for i in range(8): E('v_add_f32 v%d, v%d, v%d' % (F + i, F + i, S + i))
    for i in range(4): E('v_cvt_pk_bf16_f32 v%d, v%d, v%d' % (48 + i, F + 2 * i, F + 2 * i + 1))
    E.vmem('buffer_store_dwordx4 v[48:51], v11, s[%d:%d], 0 offen' % (SOUT, SOUT + 3), 'out')

def build(out):
    E = Emit(); E.kname = 'f'; E.stamps = False
    def fst(i):
        if STAMP:
            E('s_memtime s[%d:%d]' % (66 + 2 * i, 67 + 2 * i))
            E('s_waitcnt lgkmcnt(0)')
    E.fst = fst
    E.raw('.globl %s_kernel' % NAME); E.raw('.p2align 8'); E.raw('.type %s_kernel,@function' % NAME); E.raw('%s_kernel:' % NAME)
    E.lines.append('L_code_start:')
    E('s_cmp_ge_u32 s2, 256'); E('s_cbranch_scc1 L_exit')
    E('s_load_dwordx16 s[4:19], s[0:1], 0'); E('s_load_dwordx4 s[20:23], s[0:1], 64')
    E('v_mov_b32 v255, 0')
    E.fst(0)
    if os.environ.get('RT'): E('s_memrealtime s[70:71]'); E('s_waitcnt lgkmcnt(0)')
    stage1_prologue(E)
    E('s_cmp_lg_u32 s48, 0'); E('s_cbranch_scc1 L_s1_ch1')
    vm0, lg0, nd0 = list(E.vm), list(E.lg), E.next_dma
    E.flush(2)
    stage1_path(E, 0); vmA = list(E.vm)
    E('s_branch L_s1_join')
    E.label('L_s1_ch1'); E.vm, E.lg, E.next_dma = list(vm0), list(lg0), nd0
    E.flush(2)
    stage1_path(E, 1)
    E.label('L_s1_join')
    stage2(E)
    stage3(E)
    if STAMP:
        E('s_waitcnt vmcnt(0)')
        E.stamps = True
        E('s_memtime s[88:89]'); E('s_waitcnt lgkmcnt(0)')
        if os.environ.get('RT'): E('s_memrealtime s[72:73]'); E('s_waitcnt lgkmcnt(0)')
        E.dump_stamps()
    E.label('L_exit')
    E('s_endpgm')
    E.lines.append('.p2align 10'); E.lines.append('L_code_end:')
    s = HDR + '; @launch grid=(256,1,1) block=(512,1,1) lds=%d\n' % LDS_TOTAL
    s += '.amdgcn_target "amdgcn-amd-amdhsa--gfx950"\n.text\n' + E.text()
    s += '''.section .rodata,"a"
.p2align 6
.amdhsa_kernel %s_kernel
  .amdhsa_next_free_vgpr 256
  .amdhsa_next_free_sgpr 102
  .amdhsa_accum_offset 256
  .amdhsa_group_segment_fixed_size 0
  .amdhsa_kernarg_size 80
  .amdhsa_user_sgpr_count 2
  .amdhsa_user_sgpr_kernarg_segment_ptr 1
  .amdhsa_system_sgpr_workgroup_id_x 1
.end_amdhsa_kernel
''' % NAME
    open(out, 'w').write(s)
    print("nops inserted", E.nops_inserted, "bytes", len(s))
if __name__ == '__main__':
    build(sys.argv[1] if len(sys.argv) > 1 else 'cdna_kernels/%s.s' % NAME)
```
